```python
import torch

def _softmax(x, axis=-1):
    return torch.softmax(x, dim=axis)

def _gelu(x):
    return torch.nn.functional.gelu(x, approximate='tanh')

def _silu(x):
    return torch.nn.functional.silu(x)

def _sigmoid(x):
    return torch.sigmoid(x)

def _layernorm(x, axis=-1, eps=1e-05):
    m = x.mean(dim=axis, keepdim=True)
    v = x.var(dim=axis, keepdim=True, unbiased=False)
    return (x - m) / torch.sqrt(v + eps)

def _scatter_add(tgt, idx, src, axis=0):
    return tgt.clone().index_add_(axis, idx, src)

def _segment_sum(src, seg, n):
    out = torch.zeros((n,) + src.shape[1:], dtype=src.dtype)
    return out.index_add_(0, seg, src)

def _pad(x, pw):
    flat = tuple((v for pair in reversed(pw) for v in pair))
    return torch.nn.functional.pad(x, flat)
kernel_name = 'parallel_sum__memory_aug_recurrent_mem_tr__dense_activation_gelu__prompt'

def setup_inputs():

    _w = lambda a: (lambda t: t.to(torch.bfloat16) if t.is_floating_point() else t)(torch.as_tensor(a))

    def _A_setup():
        B, S, Dm = (1, 2048, 640)
        H, Dh = (32, 128)
        M, seg = (8, 32)
        seg = min(seg, S)
        S = S // seg * seg
        return {'x': _w((lambda *s: torch.randn(*s, dtype=torch.bfloat16) * 0.05)(B, S, Dm)), 'mem0': _w((lambda *s: torch.randn(*s, dtype=torch.bfloat16) * 0.2)(B, M, Dm)), 'Wq': _w((lambda *s: torch.randn(*s, dtype=torch.bfloat16) * 1.6)(Dm, H, Dh) * Dm ** (-0.5)), 'Wk': _w((lambda *s: torch.randn(*s, dtype=torch.bfloat16) * 1.6)(Dm, H, Dh) * Dm ** (-0.5)), 'Wv': _w((lambda *s: torch.randn(*s, dtype=torch.bfloat16) * 0.2)(Dm, H, Dh) * Dm ** (-0.5)), 'Wo': _w((lambda *s: torch.randn(*s, dtype=torch.bfloat16) * 0.2)(H, Dh, Dm) * (H * Dh) ** (-0.5)), 'seg_len': seg}
    _A_in = _A_setup()

    def _B_setup():
        B, S, D, F = (1, 2048, 640, 1728)
        return {'x': _w((lambda *s: torch.randn(*s, dtype=torch.bfloat16) * 0.05)(B, S, D)), 'w1': _w((lambda *s: torch.randn(*s, dtype=torch.bfloat16) * 0.4)(D, F) * D ** (-0.5)), 'b1': _w((lambda *s: torch.randn(*s, dtype=torch.bfloat16) * 12.8)(F) * 0.01), 'w2': _w((lambda *s: torch.randn(*s, dtype=torch.bfloat16) * 0.2)(F, D) * F ** (-0.5)), 'b2': _w((lambda *s: torch.randn(*s, dtype=torch.bfloat16) * 1.6)(D) * 0.01)}
    _B_in = _B_setup()
    return {'A_x': _A_in['x'], 'A_mem0': _A_in['mem0'], 'A_Wq': _A_in['Wq'], 'A_Wk': _A_in['Wk'], 'A_Wv': _A_in['Wv'], 'A_Wo': _A_in['Wo'], 'A_seg_len': _A_in['seg_len'], 'B_x': _B_in['x'], 'B_w1': _B_in['w1'], 'B_b1': _B_in['b1'], 'B_w2': _B_in['w2'], 'B_b2': _B_in['b2']}

def reference(A_x, A_mem0, A_Wq, A_Wk, A_Wv, A_Wo, A_seg_len, B_x, B_w1, B_b1, B_w2, B_b2):

    def _A_ref(x, mem0, Wq, Wk, Wv, Wo, seg_len):
        B, S, Dm = x.shape
        H, Dh = (Wq.shape[1], Wq.shape[2])
        M = mem0.shape[1]
        scale = Dh ** (-0.5)
        n_seg = S // seg_len
        L = M + seg_len
        idx = torch.arange(L)
        mask = (idx[:, None] < M) | (idx[:, None] >= idx[None, :])
        mem = mem0
        outs = []
        for s in range(n_seg):
            xs = x[:, s * seg_len:(s + 1) * seg_len, :].clone()
            h = torch.concatenate([mem, xs], axis=1)
            q = torch.einsum('btd,dhe->bhte', h, Wq)
            k = torch.einsum('btd,dhe->bhte', h, Wk)
            v = torch.einsum('btd,dhe->bhte', h, Wv)
            scores = torch.einsum('bhqe,bhke->bhqk', q, k) * scale
            scores = torch.where(mask[None, None], scores, -1000000000.0)
            p = _softmax(scores, axis=-1)
            o = torch.einsum('bhqk,bhke->bhqe', p, v)
            o = torch.einsum('bhte,hed->btd', o, Wo)
            mem = o[:, :M, :].clone()
            outs.append(o[:, M:, :])
        return torch.concatenate(outs, axis=1)

    def _B_ref(x, w1, b1, w2, b2):
        h = torch.einsum('bsd,df->bsf', x, w1) + b1
        h = _gelu(h)
        return torch.einsum('bsf,fd->bsd', h, w2) + b2
    x = A_x
    xn = _layernorm(x, axis=-1)
    return x + _A_ref(xn, A_mem0, A_Wq, A_Wk, A_Wv, A_Wo, A_seg_len) + _B_ref(xn, B_w1, B_b1, B_w2, B_b2)
```

```python
import re

def regs_of(tok):
    tok = tok.strip()
    tok = tok.lstrip('-')
    m = re.fullmatch(r'(?:abs\()?\|?([vas])(\d+)\|?\)?', tok)
    if m: return {(m.group(1), int(m.group(2)))}
    m = re.fullmatch(r'([vas])\[(\d+):(\d+)\]', tok)
    if m: return {(m.group(1), i) for i in range(int(m.group(2)), int(m.group(3)) + 1)}
    if tok == 'vcc': return {('s', 'vcc')}
    if tok in ('exec', 'exec_lo', 'exec_hi'): return {('s', 'exec')}
    if tok == 'm0': return {('s', 'm0')}
    return set()

TRANS = ('v_exp_f32', 'v_log_f32', 'v_rcp_f32', 'v_rsq_f32', 'v_sqrt_f32', 'v_sin_f32', 'v_cos_f32')

class I:
    def __init__(self, text):
        self.text = text
        t = text.split(';')[0].strip()
        self.label = t.endswith(':')
        self.empty = (t == '' or t.startswith('.'))
        if self.label or self.empty:
            self.op = ''; self.ops = []; self.kind = 'none'; self.w = set(); self.r = set(); self.states = 0
            return
        p = t.split(None, 1)
        self.op = p[0]
        rest = p[1] if len(p) > 1 else ''
        ops = []; depth = 0; cur = ''
        for ch in rest:
            if ch in '[(': depth += 1
            if ch in '])': depth -= 1
            if ch == ',' and depth == 0: ops.append(cur.strip()); cur = ''
            else: cur += ch
        if cur.strip(): ops.append(cur.strip())
        mods = ''
        if ops:
            sp = ops[-1].split(None, 1)
            ops[-1] = sp[0]; mods = sp[1] if len(sp) > 1 else ''
        self.ops = ops; self.mods = mods
        op = self.op
        R = [regs_of(o) for o in ops]
        self.w = set(); self.r = set(); self.states = 1
        self.passes = 0; self.srcc = set(); self.ab = set(); self.stdata = set()
        if op.startswith('v_mfma') or op.startswith('v_smfmac'):
            self.kind = 'mfma'
            self.passes = 8 if '32x32' in op else 4
            self.w = set(R[0])
            if op.startswith('v_smfmac'):
                self.srcc = set(R[0]); self.ab = R[1] | R[2] | R[3]
            else:
                self.srcc = set(R[3]); self.ab = R[1] | R[2]
            self.r = self.srcc | self.ab
        elif op.startswith('v_'):
            self.kind = 'valu'
            if op.startswith('v_cmp'):
                self.w = set(R[0]); self.r = set().union(*R[1:])
            elif 'permlane' in op and 'swap' in op:
                self.w = R[0] | R[1]; self.r = R[0] | R[1]
            elif op.startswith(('v_add_co', 'v_sub_co', 'v_addc_co', 'v_subb_co')):
                self.w = R[0] | R[1]; self.r = set().union(*R[2:])
            else:
                self.w = set(R[0]); self.r = set().union(*R[1:]) if len(R) > 1 else set()
                if op.startswith(('v_fmac', 'v_dot2c', 'v_pk_fmac')) or '_dpp' in op or 'v_writelane' in op: self.r |= R[0]
        elif op.startswith('ds_'):
            self.kind = 'ds'
            if op.startswith(('ds_read', 'ds_bpermute', 'ds_permute', 'ds_swizzle')):
                self.w = set(R[0]); self.r = set().union(*R[1:])
            else:
                self.r = set().union(*R)
        elif op.startswith(('buffer_', 'global_')):
            self.kind = 'vmem'
            lds = ' lds' in (' ' + mods) or '_lds_' in op
            if op in ('buffer_inv', 'buffer_wbl2'):
                pass
            elif 'load' in op and not lds:
                self.w = set(R[0]); self.r = set().union(*R[1:])
            elif lds:
                self.r = set().union(*R) | {('s', 'm0')}
            elif 'atomic' in op and 'sc0' in mods:
                self.w = set(R[0]); self.r = set().union(*R)
            else:
                self.r = set().union(*R)
                if 'dwordx4' in op or 'dwordx3' in op:
                    self.stdata = set(R[0]) if op.startswith('buffer_') else set(R[1])
            self.lds = lds
        elif op.startswith('s_'):
            self.kind = 'salu'
            if op == 's_nop':
                self.states = int(ops[0], 0) + 1
            elif op.startswith(('s_cmp', 's_waitcnt', 's_barrier', 's_cbranch', 's_branch', 's_endpgm', 's_sleep', 's_setprio', 's_bitcmp')):
                self.r = set().union(*R) if R else set()
            else:
                self.w = set(R[0]) if R else set(); self.r = set().union(*R[1:]) if len(R) > 1 else set()
        else:
            raise ValueError('unknown op ' + text)

def need(p, c):
    n = 0
    vw = {x for x in p.w if x[0] in 'va'}
    sw = {x for x in p.w if x[0] == 's'}
    if p.kind == 'valu':
        if c.kind == 'mfma' and vw & c.r: n = max(n, 2)
        if c.kind == 'valu':
            if 'permlane' in c.op and vw & c.r: n = max(n, 2)
            if '_dpp' in c.op and vw & c.r: n = max(n, 2)
            if c.op.startswith(('v_readlane', 'v_readfirstlane')) and vw & c.r: n = max(n, 1)
            if p.op.startswith(TRANS) and vw & c.r and not c.op.startswith(TRANS): n = max(n, 1)
            if sw & c.r: n = max(n, 4 if c.op.startswith(('v_readlane', 'v_writelane')) else 2)
            if ('op_sel' in p.mods or 'sdwa' in p.op) and vw & (c.r | c.w): n = max(n, 1)
        if c.kind == 'vmem' and sw & c.r: n = max(n, 5)
        if c.kind == 'salu' and sw & c.r and not c.op.startswith('s_cbranch'): n = max(n, 1)
    if p.kind == 'mfma':
        big = p.passes == 8
        if c.kind == 'mfma':
            if vw & c.ab: n = max(n, 12 if big else 8)
            if vw & c.srcc:
                same = (vw == c.srcc and p.passes == c.passes)
                if not same: n = max(n, 10 if big else 6)
            elif vw & c.w: n = max(n, 10 if big else 6)
        elif c.kind in ('valu', 'ds', 'vmem'):
            if vw & (c.r | c.w): n = max(n, 12 if big else 8)
            if c.kind == 'valu' and p.srcc & c.w: n = max(n, 7 if big else 3)
    if p.kind == 'vmem' and p.stdata and (p.stdata & c.w): n = max(n, 2)
    if p.kind == 'salu' and ('s', 'm0') in sw and c.kind == 'vmem' and getattr(c, 'lds', False): n = max(n, 1)
    return n

class Asm:
    def __init__(self):
        self.lines = []
    def __call__(self, text):
        for l in text.split('\n'):
            l = l.strip()
            if l: self.lines.append(l)
    def finish(self, verbose=False):
        ins = [I(l) for l in self.lines]
        added = 0
        W = 13
        def mkpreds():
            labels = {x.text.split(';')[0].strip()[:-1]: k for k, x in enumerate(ins) if x.label}
            preds = {}
            for k, x in enumerate(ins):
                if x.op.startswith(('s_cbranch', 's_branch')):
                    t = labels.get(x.ops[0])
                    if t is None: raise ValueError('undefined label ' + x.text)
                    preds.setdefault(t, []).append(k)
            return preds
        changed = True
        while changed:
            changed = False
            preds = mkpreds()
            k = 0
            while k < len(ins):
                c = ins[k]
                if c.kind != 'none' and c.op != 's_nop':
                    worst = 0
                    stack = [(k - 1, (), False)]
                    seen = set()
                    while stack:
                        j, path, viabranch = stack.pop()
                        while j >= 0 and sum(x.states for x in path) < W:
                            key = (j, tuple(id(x) for x in path))
                            if key in seen: break
                            seen.add(key)
                            p = ins[j]
                            if p.op in ('s_branch', 's_endpgm') and not viabranch: break
                            viabranch = False
                            if p.label:
                                for q in preds.get(j, []): stack.append((q, path, True))
                                j -= 1
                                continue
                            if p.kind == 'none': j -= 1; continue
                            n = need(p, c)
                            if n > 0:
                                t = 0; free = p.passes if p.kind == 'mfma' else 0
                                t += 1
                                for x in path:
                                    if x.kind == 'mfma':
                                        t = max(t, free); free = t + x.passes
                                    t += x.states
                                worst = max(worst, n - (t - 1))
                            path = (p,) + path
                            j -= 1
                    if worst > 0:
                        ins.insert(k, I(f's_nop {worst - 1} ; pad'))
                        added += worst
                        changed = True
                        preds = mkpreds()
                        k += 1
                k += 1
        if verbose: print('wait states added:', added)
        return '\n'.join(x.text for x in ins) + '\n'
```

```python
from asmlib import Asm
from layout import *
from chain import lanebits, Cnt, fbits, SRD, sW, SPIN_MAX
import math

DBG = 's[8:11]'
sIDX = 's13'
sJ = 's14'
sA, sB, sD, sE = 's35', 's36', 's37', 's39'
sSPIN = 's38'
LANE = 'v0'
def V(b, n=4): return f'v[{b}:{b+n-1}]'
def spin(a): a(f's_add_u32 {sSPIN}, {sSPIN}, 1\ns_cmp_ge_u32 {sSPIN}, {SPIN_MAX}\ns_cbranch_scc1 L_err')
def mksrd(a, d, karg, nbytes):
    a(f's_load_dwordx2 s[{d}:{d+1}], s[0:1], {karg}\ns_waitcnt lgkmcnt(0)\ns_mov_b32 s{d+2}, {nbytes}\ns_mov_b32 s{d+3}, 0x20000')
def wait_word(a, tag, srd, soff, off, need, tmp, pause=True):
    a(f's_mov_b32 {sSPIN}, 0\nL_ww_{tag}:\nbuffer_load_dword {tmp}, off, {srd}, {soff} offset:{off} sc1')
    spin(a)
    a(f's_waitcnt vmcnt(0)\nv_cmp_gt_u32 vcc, {need}, {tmp}\ns_cbranch_vccz L_ww_{tag}_ok')
    if pause: a('s_sleep 4')
    a(f's_branch L_ww_{tag}\nL_ww_{tag}_ok:')
def wait_line(a, tag, soff, nlanes, need, tmp, addr, cache=None):
    if cache: a(f's_cmp_ge_u32 {cache}, {need}\ns_cbranch_scc1 L_wl_{tag}_end')
    m = (1 << nlanes) - 1
    a(f's_mov_b32 {sSPIN}, 0\ns_mov_b32 exec_lo, {hex(m)}\ns_mov_b32 exec_hi, 0\nL_wl_{tag}:\nbuffer_load_dword {tmp}, {addr}, {SRD}, {soff} offen sc1')
    spin(a)
    a(f's_waitcnt vmcnt(0)\nv_cmp_gt_u32 vcc, {need}, {tmp}\ns_cbranch_vccz L_wl_{tag}_ok\ns_sleep 2\ns_branch L_wl_{tag}\nL_wl_{tag}_ok:')
    if cache:
        a(f'v_cmp_gt_u32 vcc, 32, {tmp}\ns_cmp_eq_u64 vcc, 0\ns_cselect_b32 {cache}, 32, {cache}')
    a(f's_mov_b64 exec, -1\nL_wl_{tag}_end:')
def rbf(a, dst, src):
    a(f'v_cvt_pk_bf16_f32 {dst}, {src}, {src}\nv_and_b32 {dst}, 0xffff0000, {dst}')

def layernorm(a, seg):
    mksrd(a, 80, 0, 2048 * 1280)
    lanebits(a, 'v1', 'v2', [(0, 5, 1280), (5, 1, 16)], lane=LANE)
    a(f's_mul_i32 {sA}, {seg}, 40960\ns_mul_i32 {sB}, {sW}, 320\ns_add_u32 {sA}, {sA}, {sB}')
    R, X = 8, 48
    for k in range(10): a(f'buffer_load_dwordx4 {V(R+4*k)}, v1, s[80:83], {sA} offen offset:{32*k}')
    a(f'v_and_b32 v2, 31, {LANE}\nv_lshlrev_b32 v3, 4, v2\ns_lshl_b32 {sB}, {sW}, 2\nv_add_u32 v2, {sB}, v3')
    for k in range(10):
        a(f's_waitcnt vmcnt({9-k})')
        for r in range(4):
            a(f'v_lshlrev_b32 v{X+8*k+2*r}, 16, v{R+4*k+r}\nv_and_b32 v{X+8*k+2*r+1}, 0xffff0000, v{R+4*k+r}')
    def allsum(off):
        a(f'''
        v_add_f32 v4, v4, v5
        v_mov_b32 v5, v4
        v_permlane32_swap_b32 v4, v5
        v_add_f32 v4, v4, v5
        ds_write_b32 v2, v4 offset:{off}
        s_waitcnt lgkmcnt(0)
        s_barrier
        ds_read_b128 v[4:7], v3 offset:{off}
        s_waitcnt lgkmcnt(0)
        v_add_f32 v4, v4, v5
        v_add_f32 v6, v6, v7
        v_add_f32 v4, v4, v6
        v_mul_f32 v4, {hex(fbits(1 / 640))}, v4
        ''')
    a(f'v_pk_add_f32 v[4:5], v[{X}:{X+1}], v[{X+2}:{X+3}]')
    for i in range(2, 40): a(f'v_pk_add_f32 v[4:5], v[4:5], v[{X+2*i}:{X+2*i+1}]')
    allsum(0)
    a('v_sub_f32 v128, 0, v4\nv_mov_b32 v129, v128')
    rbf(a, 'v130', 'v128'); a('v_mov_b32 v131, v130')
    a('v_mov_b32 v4, 0\nv_mov_b32 v5, 0')
    for i in range(40):
        a(f'v_pk_add_f32 v[6:7], v[{X+2*i}:{X+2*i+1}], v[128:129]\nv_pk_fma_f32 v[4:5], v[6:7], v[6:7], v[4:5]')
    allsum(512)
    rbf(a, 'v4', 'v4')
    a(f'v_add_f32 v4, {hex(fbits(1e-5))}, v4'); rbf(a, 'v4', 'v4')
    a('v_sqrt_f32 v4, v4'); rbf(a, 'v4', 'v4')
    a('v_rcp_f32 v132, v4\nv_fma_f32 v5, -v4, v132, 1.0\nv_fma_f32 v132, v5, v132, v132\nv_mov_b32 v133, v132')
    a(f's_mul_i32 {sA}, {seg}, 40960\ns_mul_i32 {sB}, {sW}, 10240\ns_add_u32 {sA}, {sA}, {sB}\ns_add_u32 {sA}, {sA}, {OFF_XN}\nv_lshlrev_b32 v1, 4, {LANE}')
    for k in range(10):
        for r in range(4):
            p = X + 8 * k + 2 * r
            a(f'''
            v_pk_add_f32 v[{p}:{p+1}], v[{p}:{p+1}], v[130:131]
            v_cvt_pk_bf16_f32 v6, v{p}, v{p+1}
            v_lshlrev_b32 v{p}, 16, v6
            v_and_b32 v{p+1}, 0xffff0000, v6
            v_pk_mul_f32 v[{p}:{p+1}], v[{p}:{p+1}], v[132:133]
            v_cvt_pk_bf16_f32 v{R+4*k+r}, v{p}, v{p+1}
            ''')
        if k and k % 4 == 0: a(f's_add_u32 {sA}, {sA}, 4096')
        a(f'buffer_store_dwordx4 {V(R+4*k)}, v1, {SRD}, {sA} offen offset:{1024*(k%4)} sc1')
    a('s_waitcnt vmcnt(0)\ns_barrier')
    wait_word(a, 'lnclr', DBG, 0, D_CLEAR, 1, 'v4')
    a(f'''
    s_cmp_eq_u32 {sW}, 0
    s_cbranch_scc0 L_ln_nf
    s_lshl_b32 {sA}, {seg}, 7
    s_add_u32 {sA}, {sA}, {OFF_FXN}
    v_mov_b32 v4, 1
    s_mov_b64 exec, 1
    buffer_store_dword v4, off, {SRD}, {sA} sc1
    s_mov_b64 exec, -1
    L_ln_nf:
    ''')

def wreg(n):
    return f'a[{4*n}:{4*n+3}]' if n < 64 else f'v[{wreg.v0+4*(n-64)}:{wreg.v0+4*(n-64)+3}]'
def wreg2(n, e):
    return f'a[{4*n+2*e}:{4*n+2*e+1}]' if n < 64 else f'v[{wreg.v0+4*(n-64)+2*e}:{wreg.v0+4*(n-64)+2*e+1}]'
def load_stationary(a, ops, perm):
    N = len(ops); SL = 40
    a(f's_mul_i32 s100, {sW}, {SL * 1024}\nv_lshl_add_u32 v1, {LANE}, 3, s100')
    def dma(n):
        srd, va, base, off = ops[n]
        a(f's_add_u32 m0, s100, {(n % SL) * 1024}\ns_add_u32 {sA}, {base}, {off}\nbuffer_load_dwordx4 {va}, {srd}, {sA} offen lds')
    for n in range(min(SL, N)): dma(n)
    G = 4
    for n0 in range(0, N, G):
        grp = range(n0, min(n0 + G, N))
        issued = min(SL + n0, N)
        a(f's_waitcnt vmcnt({issued - grp[-1] - 1})')
        for n in grp:
            for e in range(2): a(f'ds_read_b64_tr_b16 {wreg2(n, e)}, v1 offset:{(n % SL) * 1024 + e * 512}')
        a('s_waitcnt lgkmcnt(0)')
        for n in grp:
            if n + SL < N: dma(n + SL)
def src_pattern(a, dst, stride, perm):
    if not perm: rows = [(4, 1, 8 * stride), (5, 1, 4 * stride)]
    else: rows = [(4, 1, 4 * stride), (5, 1, 8 * stride)]
    lanebits(a, dst, 'v2', rows + [(1, 2, stride), (3, 1, 32), (0, 1, 16)], lane=LANE)

def projection(a, kind):
    t = kind
    wreg.v0 = 192
    ACC = [[64, 80], [96, 112]]; FR = 128; PK = 144; BI = 160; TMP = 8
    sSEG, sI, sOUT, sFL, sLB, sXOK, sXS = 's16', 's17', 's18', 's19', 's20', 's21', 's22'
    if t == 'kv':
        mksrd(a, 80, 24, 640 * 8192); mksrd(a, 84, 32, 640 * 8192)
        src_pattern(a, 'v3', 8192, False)
        a(f's_lshl_b32 {sA}, {sIDX}, 8\ns_lshl_b32 {sB}, {sW}, 6\ns_add_u32 s96, {sA}, {sB}')
        ops = [(('s[80:83]', 's[84:87]')[tl], 'v3', 's96', ks * 16 * 8192) for ks in range(40) for tl in range(2)]
    elif t == 'q':
        mksrd(a, 80, 16, 640 * 8192)
        src_pattern(a, 'v3', 8192, False)
        a(f's_lshl_b32 {sA}, {sIDX}, 9\ns_lshl_b32 {sB}, {sW}, 6\ns_add_u32 s96, {sA}, {sB}')
        ops = [('s[80:83]', 'v3', 's96', ks * 16 * 8192 + 256 * tl) for ks in range(40) for tl in range(2)]
    else:
        mksrd(a, 80, 64, 640 * 3456); mksrd(a, 84, 72, 3456)
        src_pattern(a, 'v3', 3456, False)
        a(f'''
        s_lshl_b32 {sA}, {sIDX}, 2
        s_add_u32 {sE}, {sA}, {sW}
        s_cmp_eq_u32 {sE}, 27
        s_cselect_b32 {sA}, 0, {sE}
        s_lshl_b32 s96, {sA}, 7
        ''')
        ops = [('s[80:83]', 'v3', 's96', ks * 16 * 3456 + 64 * tl) for ks in range(40) for tl in range(2)]
        lanebits(a, 'v4', 'v2', [(5, 1, 8)], lane=LANE)
        for tl in range(2):
            for q in range(4): a(f'buffer_load_dwordx2 v[{TMP+8*tl+2*q}:{TMP+8*tl+2*q+1}], v4, s[84:87], s96 offen offset:{64*tl+16*q}')
        a('s_waitcnt vmcnt(0)')
        for tl in range(2):
            for q in range(4):
                for e in range(2):
                    s = TMP + 8 * tl + 2 * q + e; d = BI + 16 * tl + 4 * q + 2 * e
                    a(f'v_lshlrev_b32 v{d}, 16, v{s}\nv_and_b32 v{d+1}, 0xffff0000, v{s}')
    if t != 'kv':
        wait_word(a, t + 'clr0', DBG, 0, D_CLEAR, 1, 'v4')
        a(f's_mov_b32 {sA}, {OFF_FXN + 63 * 128}')
        wait_word(a, t + 'hold', SRD, sA, 0, 1, 'v4')
    load_stationary(a, ops, False)
    wait_word(a, t + 'clr', DBG, 0, D_CLEAR, 1, 'v4')
    if t == 'kv':
        a(f's_lshl_b32 {sOUT}, {sIDX}, 14\ns_lshl_b32 {sA}, {sW}, 11\ns_add_u32 {sOUT}, {sOUT}, {sA}\ns_add_u32 {sOUT}, {sOUT}, {OFF_KV}')
        seg_stride, tile_off = 32 * 16384, 8192
        a(f's_lshl_b32 {sFL}, {sIDX}, 7\ns_add_u32 {sFL}, {sFL}, {OFF_FKV}\ns_lshl_b32 {sA}, {sJ}, 4\ns_add_u32 {sFL}, {sFL}, {sA}\ns_lshl_b32 {sA}, {sW}, 2\ns_add_u32 {sFL}, {sFL}, {sA}')
    elif t == 'q':
        a(f's_lshl_b32 {sOUT}, {sIDX}, 14\ns_lshl_b32 {sA}, {sW}, 11\ns_add_u32 {sOUT}, {sOUT}, {sA}\ns_add_u32 {sOUT}, {sOUT}, {OFF_Q}')
        seg_stride, tile_off = 32 * 8192, 8192
        a(f's_lshl_b32 {sFL}, {sIDX}, 7\ns_add_u32 {sFL}, {sFL}, {OFF_FQ}\ns_lshl_b32 {sA}, {sJ}, 4\ns_add_u32 {sFL}, {sFL}, {sA}\ns_lshl_b32 {sA}, {sW}, 2\ns_add_u32 {sFL}, {sFL}, {sA}')
    else:
        a(f's_lshl_b32 {sOUT}, {sE}, 12\ns_add_u32 {sOUT}, {sOUT}, {OFF_H}')
        seg_stride, tile_off = 112 * 1024, 2048
        a(f's_lshl_b32 {sFL}, {sJ}, 7\ns_add_u32 {sFL}, {sFL}, {OFF_FH}\ns_lshl_b32 {sA}, {sE}, 2\ns_add_u32 {sFL}, {sFL}, {sA}')
    a(f's_mul_i32 {sA}, {sJ}, {seg_stride}\ns_add_u32 {sOUT}, {sOUT}, {sA}')
    a(f'v_lshlrev_b32 v1, 4, {LANE}\ns_mov_b32 {sXOK}, 0\ns_mul_i32 {sXS}, {sW}, 10240')
    def xwait(tag, iseg):
        a(f's_lshl_b32 {sE}, {iseg}, 8\ns_lshl_b32 {sB}, {sJ}, 7\ns_add_u32 {sE}, {sE}, {sB}\ns_add_u32 {sE}, {sE}, {OFF_FXN}')
        wait_word(a, tag, SRD, sE, 0, 1, 'v4')
    def xdma_setup(iseg, buf):
        return [f's_lshl_b32 {sB}, {iseg}, 1', f's_add_u32 {sB}, {sB}, {sJ}', f's_mul_i32 {sB}, {sB}, 40960', f's_add_u32 {sB}, {sB}, {sXS}',
                f's_add_u32 {sB}, {sB}, {OFF_XN}', f's_add_u32 {sD}, {buf}, {sXS}']
    def xdma(k): return f's_add_u32 m0, {sD}, {1024 * k}\ns_add_u32 {sA}, {sB}, {1024 * k}\nbuffer_load_dwordx4 v1, {SRD}, {sA} offen sc1 lds'
    a(f's_barrier\ns_mov_b32 {sI}, 0\nL_{t}_xw:')
    xwait(t + 'xw', sI)
    a(f's_add_u32 {sI}, {sI}, 1\ns_cmp_lt_u32 {sI}, 2\ns_cbranch_scc1 L_{t}_xw')
    for i in range(2):
        for l in xdma_setup(i, 40960 * i): a(l)
        for k in range(10): a(xdma(k))
    a(f's_lshl_b32 {sE}, {sJ}, 7\ns_add_u32 {sE}, {sE}, {OFF_FXN}\nv_lshlrev_b32 v5, 8, {LANE}')
    a(f's_mov_b32 {sSPIN}, 0\ns_mov_b32 exec_hi, 0\nL_{t}_xall:\nbuffer_load_dword v4, v5, {SRD}, {sE} offen sc1')
    spin(a)
    a(f's_waitcnt vmcnt(0)\nv_cmp_gt_u32 vcc, 1, v4\ns_cbranch_vccnz L_{t}_xall\ns_mov_b64 exec, -1')
    a(f's_mov_b32 {sI}, 0\ns_mov_b32 {sLB}, 0\ns_barrier')
    c0 = -2 * math.log2(math.e) * math.sqrt(2 / math.pi)
    a(f's_mov_b32 s24, {hex(fbits(c0))}\ns_mov_b32 s25, {hex(fbits(c0 * 0.044715))}\nv_mov_b32 v6, s24')
    def epilogue(par):
        o = []
        for tl in range(2):
            A = ACC[par][tl]
            if t == 'h':
                for r in range(16):
                    x = f'v{A+r}'; u = f'v{TMP + r % 4}'
                    o += [f'v_mul_f32 {u}, {x}, {x}', f'v_fma_f32 {u}, {u}, s25, v6', f'v_mul_f32 {u}, {u}, {x}', f'v_exp_f32 {u}, {u}',
                          f'v_add_f32 {u}, 1.0, {u}', f'v_rcp_f32 {u}, {u}', f'v_mul_f32 {x}, {x}, {u}']
            for half in range(2):
                for r in range(4):
                    o.append(f'v_cvt_pk_bf16_f32 v{PK+8*tl+4*half+r}, v{A+8*half+2*r}, v{A+8*half+2*r+1}')
                if tl: o.append(f's_add_u32 s23, {sOUT}, {tile_off}')
                o.append(f'buffer_store_dwordx4 {V(PK+8*tl+4*half)}, v1, {SRD}, {"s23" if tl else sOUT} offen offset:{1024*half} sc1')
        o.append(f's_add_u32 {sOUT}, {sOUT}, {2 * seg_stride}')
        return o
    def body(par, first):
        lg = Cnt(a, 'lgkmcnt', 15)
        fill = []
        if not first: fill += epilogue(1 - par)
        else: fill += ['s_nop 0'] * 4
        nst = len(fill)
        a(f'v_add_u32 v7, {sLB}, v1\ns_add_u32 {sE}, {sI}, 2\ns_min_u32 {sE}, {sE}, 31\ns_add_u32 s26, {sLB}, {2 * 40960}\ns_cmp_ge_u32 s26, {3 * 40960}\ns_cselect_b32 {sA}, {3 * 40960}, 0\ns_sub_u32 s26, s26, {sA}')
        for l in xdma_setup(sE, 's26'): a(l)
        fill += [xdma(k) for k in range(10)]
        def rd(ks): lg.issue(f'ds_read_b128 {V(FR + 4 * (ks % 4))}, v7 offset:{1024 * ks}', ks)
        for ks in range(3): rd(ks)
        per = -(-len(fill) // 74)
        for ks in range(40):
            lg.wait(ks)
            for tl in range(2):
                w, x, A = wreg(2 * ks + tl), V(FR + 4 * (ks % 4)), V(ACC[par][tl], 16)
                c = A if ks else (V(BI + 16 * tl, 16) if t == 'h' else 0)
                ab = f'{x}, {w}' if (t == 'kv' and tl == 1) else f'{w}, {x}'
                a(f'v_mfma_f32_32x32x16_bf16 {A}, {ab}, {c}')
                if tl == 1 and ks + 3 < 40: rd(ks + 3)
                if 2 * ks + tl >= 2:
                    for _ in range(per):
                        if fill: a(fill.pop(0))
        assert not fill
        a(f's_waitcnt vmcnt(10)')
        if not first:
            a(f'v_mov_b32 v4, {sI}\ns_mov_b64 exec, 1\nbuffer_store_dword v4, off, {SRD}, {sFL} sc1\ns_mov_b64 exec, -1')
        a(f's_add_u32 {sLB}, {sLB}, 40960\ns_cmp_ge_u32 {sLB}, {3 * 40960}\ns_cselect_b32 {sLB}, 0, {sLB}\ns_add_u32 {sI}, {sI}, 1\ns_barrier')
    body(0, True)
    a(f'L_{t}_loop:')
    body(1, False)
    a(f's_cmp_ge_u32 {sI}, 32\ns_cbranch_scc1 L_{t}_fin')
    body(0, False)
    a(f's_branch L_{t}_loop\nL_{t}_fin:')
    for o in epilogue(1): a(o)
    a(f's_waitcnt vmcnt(0)\nv_mov_b32 v4, 32\ns_mov_b64 exec, 1\nbuffer_store_dword v4, off, {SRD}, {sFL} sc1\ns_mov_b64 exec, -1\ns_waitcnt vmcnt(0)')

def attention(a):
    sH, sI, sKV, sQ, sEX, sO, sFKV, sFQ, sFX, sFO, cKV, cQ, sN, sC = ['s%d' % i for i in range(16, 30)]
    MK = 48
    QF, KF, VF, KM, VM, S, SM, O, P, T = 8, 40, 72, 104, 136, 144, 160, 176, 240, 250
    a(f'''
    s_lshl_b32 {sH}, {sIDX}, 2
    s_add_u32 {sH}, {sH}, {sW}
    s_lshl_b32 {sA}, {sJ}, 5
    s_add_u32 {sA}, {sA}, {sH}
    s_lshl_b32 {sKV}, {sA}, 14
    s_add_u32 {sKV}, {sKV}, {OFF_KV}
    s_lshl_b32 {sQ}, {sA}, 13
    s_add_u32 {sEX}, {sQ}, {OFF_EX}
    s_add_u32 {sO}, {sQ}, {OFF_O}
    s_add_u32 {sQ}, {sQ}, {OFF_Q}
    s_lshl_b32 {sB}, {sJ}, 4
    s_lshl_b32 {sFKV}, {sH}, 7
    s_add_u32 {sFKV}, {sFKV}, {sB}
    s_add_u32 {sFKV}, {sFKV}, {OFF_FKV}
    s_lshr_b32 {sFQ}, {sH}, 1
    s_lshl_b32 {sFQ}, {sFQ}, 7
    s_add_u32 {sFQ}, {sFQ}, {sB}
    s_add_u32 {sFQ}, {sFQ}, {OFF_FQ}
    s_lshl_b32 {sFX}, {sH}, 8
    s_add_u32 {sFX}, {sFX}, {OFF_FEX}
    s_lshl_b32 {sFO}, {sJ}, 7
    s_lshl_b32 {sB}, {sH}, 2
    s_add_u32 {sFO}, {sFO}, {sB}
    s_add_u32 {sFO}, {sFO}, {OFF_FO}
    s_mov_b32 {cKV}, 0
    s_mov_b32 {cQ}, 0
    s_mov_b32 {sI}, 0
    s_mov_b32 {sC}, {hex(fbits(128 ** -0.5 * math.log2(math.e)))}
    v_lshlrev_b32 v1, 4, {LANE}
    v_lshlrev_b32 v2, 2, {LANE}
    v_lshlrev_b32 v3, 7, {LANE}
    v_and_b32 v6, 31, {LANE}
    v_bfe_u32 v7, {LANE}, 5, 1
    v_lshlrev_b32 v7, 2, v7
    ''')
    for r in range(16):
        a(f'v_add_u32 v8, {8 * (r // 4) + r % 4}, v7\nv_cmp_le_u32 s[{MK+2*r}:{MK+2*r+1}], v8, v6')
    lanebits(a, 'v4', 'v8', [(5, 1, 256), (1, 2, 64), (0, 1, 16)], lane=LANE)
    lanebits(a, 'v5', 'v8', [(5, 1, 256), (0, 4, 8), (4, 1, 4)], lane=LANE)
    wait_word(a, 'atclr', DBG, 0, D_CLEAR, 1, 'v8')
    a(f'L_at_loop:\ns_add_u32 {sN}, {sI}, 1')
    wait_line(a, 'atkv', sFKV, 4, sN, 'v252', 'v2', cKV)
    wait_line(a, 'atq', sFQ, 4, sN, 'v252', 'v2', cQ)
    def ld8(dst, base, extra):
        for f in range(8):
            if f % 4 == 0: a(f's_add_u32 {sA}, {base}, {extra + 1024 * f}')
            a(f'buffer_load_dwordx4 {V(dst+4*f)}, v1, {SRD}, {sA} offen offset:{1024*(f%4)} sc1')
    ld8(QF, sQ, 0); ld8(KF, sKV, 0); ld8(VF, sKV, 8192)
    for f in range(8):
        a(f's_waitcnt vmcnt({15 - f})\nv_mfma_f32_32x32x16_bf16 {V(S,16)}, {V(KF+4*f)}, {V(QF+4*f)}, {V(S,16) if f else 0}')
    a(f'v_mov_b32 v{T}, 0xff800000')
    for r in range(16): a(f'v_cndmask_b32 v{S+r}, v{T}, v{S+r}, s[{MK+2*r}:{MK+2*r+1}]')
    a(f'v_max3_f32 v{T}, v{S}, v{S+1}, v{S+2}')
    for r in range(3, 15, 2): a(f'v_max3_f32 v{T}, v{T}, v{S+r}, v{S+r+1}')
    a(f'v_max_f32 v{T}, v{T}, v{S+15}')
    a(f's_lshl_b32 {sN}, {sI}, 1\ns_add_u32 {sN}, {sN}, {sJ}\ns_add_u32 {sN}, {sN}, 1')
    wait_line(a, 'atex', sFX, 2, sN, 'v252', 'v3')
    for f in range(8): a(f'buffer_load_dwordx4 {V(KM+4*f)}, v4, {SRD}, {sEX} offen offset:{1024*(f//2)+512*(f%2)} sc1')
    a(f's_add_u32 {sA}, {sEX}, 4096')
    for p in range(4):
        for e in range(2): a(f'buffer_load_dword v{VM+2*p+e}, v5, {SRD}, {sA} offen offset:{512*p+128*e} sc1')
    for f in range(8):
        a(f's_waitcnt vmcnt({15 - f})\nv_mfma_f32_32x32x16_bf16 {V(SM,16)}, {V(KM+4*f)}, {V(QF+4*f)}, {V(SM,16) if f else 0}')
    a(f'''
    v_max3_f32 v{T}, v{T}, v{SM}, v{SM+1}
    v_max3_f32 v{T}, v{T}, v{SM+2}, v{SM+3}
    v_mov_b32 v{T+1}, v{T}
    v_permlane32_swap_b32 v{T}, v{T+1}
    v_max_f32 v{T}, v{T}, v{T+1}
    v_mul_f32 v{T}, {sC}, v{T}
    ''')
    vals = [S + r for r in range(16)] + [SM + r for r in range(4)]
    for r in vals: a(f'v_fma_f32 v{r}, v{r}, {sC}, -v{T}')
    for r in vals: a(f'v_exp_f32 v{r}, v{r}')
    a(f'v_add_f32 v{T}, v{vals[0]}, v{vals[1]}')
    for r in vals[2:]: a(f'v_add_f32 v{T}, v{T}, v{r}')
    a(f'v_mov_b32 v{T+1}, v{T}\nv_permlane32_swap_b32 v{T}, v{T+1}\nv_add_f32 v{T}, v{T}, v{T+1}\nv_rcp_f32 v{T}, v{T}')
    for r in vals: a(f'v_mul_f32 v{r}, v{T}, v{r}')
    for i in range(10): a(f'v_cvt_pk_bf16_f32 v{P+i}, v{vals[2*i]}, v{vals[2*i+1]}')
    a('s_waitcnt vmcnt(0)')
    for p in range(4):
        A = V(O + 16 * p, 16)
        a(f'v_mfma_f32_32x32x16_bf16 {A}, {V(VF+8*p)}, {V(P)}, 0')
        a(f'v_mfma_f32_32x32x16_bf16 {A}, {V(VF+8*p+4)}, {V(P+4)}, {A}')
        a(f'v_mfma_f32_32x32x8_bf16 {A}, {V(VM+2*p,2)}, {V(P+8,2)}, {A}')
    for f in range(8):
        for r in range(4): a(f'v_cvt_pk_bf16_f32 v{KF+4*f+r}, v{O+8*f+2*r}, v{O+8*f+2*r+1}')
        if f % 4 == 0: a(f's_add_u32 {sA}, {sO}, {1024 * f}')
        a(f'buffer_store_dwordx4 {V(KF+4*f)}, v1, {SRD}, {sA} offen offset:{1024*(f%4)} sc1')
    a(f'''
    s_add_u32 {sI}, {sI}, 1
    v_mov_b32 v252, {sI}
    s_add_u32 {sKV}, {sKV}, {64 * 16384}
    s_add_u32 {sQ}, {sQ}, {64 * 8192}
    s_add_u32 {sEX}, {sEX}, {64 * 8192}
    s_add_u32 {sO}, {sO}, {64 * 8192}
    s_waitcnt vmcnt(0)
    s_mov_b64 exec, 1
    buffer_store_dword v252, off, {SRD}, {sFO} sc1
    s_mov_b64 exec, -1
    s_cmp_lt_u32 {sI}, 32
    s_cbranch_scc1 L_at_loop
    s_waitcnt vmcnt(0)
    ''')

def final(a):
    sI, sH, sO, sX, sFH, sFO, cH, sN = ['s%d' % i for i in range(16, 24)]
    wreg.v0 = 144
    ACC, RING, NR = 8, 24, 28
    mksrd(a, 80, 40, 4096 * 1280); mksrd(a, 84, 80, 1728 * 1280); mksrd(a, 88, 0, 2048 * 1280); mksrd(a, 92, 96, 2048 * 1280)
    mksrd(a, 72, 88, 1280)
    src_pattern(a, 'v3', 1280, True)
    a(f'''
    s_lshl_b32 {sA}, {sIDX}, 6
    s_mul_i32 {sB}, {sW}, {27 * 16 * 1280}
    s_add_u32 s96, {sA}, {sB}
    s_mul_i32 {sB}, {sW}, {64 * 16 * 1280}
    s_add_u32 s97, {sA}, {sB}
    ''')
    ops = [('s[84:87]', 'v3', 's96', k * 16 * 1280) for k in range(27)] + [('s[80:83]', 'v3', 's97', k * 16 * 1280) for k in range(64)]
    wait_word(a, 'f2clr', DBG, 0, D_CLEAR, 1, 'v4')
    a(f's_mov_b32 {sA}, {OFF_FKV}')
    wait_word(a, 'f2hold', SRD, sA, 0, 1, 'v4')
    load_stationary(a, ops, True)
    a(f'''
    s_barrier
    s_mul_i32 {sH}, {sJ}, {112 * 1024}
    s_mul_i32 {sA}, {sW}, {27 * 1024}
    s_add_u32 {sH}, {sH}, {sA}
    s_add_u32 {sH}, {sH}, {OFF_H}
    s_lshl_b32 {sO}, {sJ}, 18
    s_lshl_b32 {sA}, {sW}, 16
    s_add_u32 {sO}, {sO}, {sA}
    s_add_u32 {sO}, {sO}, {OFF_O}
    s_mul_i32 {sX}, {sJ}, 40960
    s_lshl_b32 {sA}, {sIDX}, 6
    s_add_u32 {sX}, {sX}, {sA}
    s_lshl_b32 {sB}, {sJ}, 7
    s_add_u32 {sFH}, {sB}, {OFF_FH}
    s_add_u32 {sFO}, {sB}, {OFF_FO}
    s_mov_b32 {cH}, 0
    s_mov_b32 {sI}, 0
    v_lshlrev_b32 v1, 4, {LANE}
    v_lshlrev_b32 v2, 2, {LANE}
    ''')
    lanebits(a, 'v3', 'v136', [(0, 5, 144), (5, 1, 16)], lane=LANE)
    a(f's_mul_i32 {sB}, {sW}, {32 * 144}\nv_add_u32 v3, {sB}, v3')
    lanebits(a, 'v4', 'v136', [(3, 3, 144), (0, 3, 16)], lane=LANE)
    a(f's_mul_i32 {sB}, {sW}, {8 * 144}\nv_add_u32 v4, {sB}, v4')
    lanebits(a, 'v5', 'v136', [(3, 3, 1280), (0, 3, 8)], lane=LANE)
    a(f's_mul_i32 {sB}, {sW}, {8 * 1280}\nv_add_u32 v5, {sB}, v5')
    lanebits(a, 'v6', 'v136', [(0, 3, 8)], lane=LANE)
    a(f'buffer_load_dwordx2 v[136:137], v6, s[72:75], {sA} offen\ns_waitcnt vmcnt(0)')
    a('v_lshlrev_b32 v140, 16, v136\nv_and_b32 v141, 0xffff0000, v136\nv_lshlrev_b32 v142, 16, v137\nv_and_b32 v143, 0xffff0000, v137')
    a(f'L_f2_loop:\ns_add_u32 {sN}, {sI}, 1')
    wait_line(a, 'f2h', sFH, 27, sN, 'v7', 'v2', cH)
    def run(n0, cnt, base, pre=None):
        vm = Cnt(a, 'vmcnt', 63)
        def ld(k):
            if k % 4 == 0: a(f's_add_u32 {sA}, {base}, {1024 * k}')
            vm.issue(f'buffer_load_dwordx4 {V(RING + 4 * (k % NR))}, v1, {SRD}, {sA} offen offset:{1024*(k%4)} sc1', k)
        for k in range(min(NR, cnt)): ld(k)
        for k in range(cnt):
            vm.wait(k)
            a(f'v_mfma_f32_32x32x16_bf16 {V(ACC,16)}, {wreg(n0 + k)}, {V(RING + 4 * (k % NR))}, {V(ACC,16) if n0 + k else 0}')
            if k + NR < cnt: ld(k + NR)
    a(f'buffer_load_dwordx2 v[138:139], v5, s[88:91], {sX} offen')
    run(0, 27, sH)
    wait_line(a, 'f2o', sFO, 32, sN, 'v7', 'v2')
    run(27, 64, sO)
    for q in range(4): a(f'ds_write_b128 v3, {V(ACC+4*q)} offset:{32*q}')
    a('s_waitcnt lgkmcnt(0)\ns_barrier')
    for w in range(4): a(f'ds_read_b128 {V(RING+4*w)}, v4 offset:{w * 32 * 144}')
    a('v_lshlrev_b32 v8, 16, v138\nv_and_b32 v9, 0xffff0000, v138\nv_lshlrev_b32 v10, 16, v139\nv_and_b32 v11, 0xffff0000, v139')
    for r in range(4): a(f'v_add_f32 v{8+r}, v{8+r}, v{140+r}')
    for w in range(4):
        a(f's_waitcnt lgkmcnt({3-w})')
        for r in range(4): a(f'v_add_f32 v{8+r}, v{8+r}, v{RING+4*w+r}')
    a(f'''
    v_cvt_pk_bf16_f32 v8, v8, v9
    v_cvt_pk_bf16_f32 v9, v10, v11
    buffer_store_dwordx2 v[8:9], v5, s[92:95], {sX} offen
    s_barrier
    s_add_u32 {sI}, {sI}, 1
    s_add_u32 {sH}, {sH}, {2 * 112 * 1024}
    s_add_u32 {sO}, {sO}, {2 << 18}
    s_add_u32 {sX}, {sX}, {2 * 40960}
    s_cmp_lt_u32 {sI}, 32
    s_cbranch_scc1 L_f2_loop
    s_waitcnt vmcnt(0)
    ''')
```

```python
from asmlib import Asm
from layout import *
import math, struct

def fbits(x): return struct.unpack('<I', struct.pack('<f', x))[0]

vIDX, vL, vWB, vAF, vTQ, vTK, vQW, vOW, vST, vAG, vPV, vH4, vH2, vSP = [f'v{i}' for i in range(14)]
QB = 14
def Q(n, j=None):
    b = QB + 4 * n
    if j is None: return f'v[{b}:{b+3}]'
    return f'v{b+j}'
def QP(n, j): return f'v[{QB+4*n+j}:{QB+4*n+j+1}]'
def Q8(n): return f'v[{QB+4*n}:{QB+4*n+7}]'
X0, X1, XP = 'v78', 'v79', 'v[78:79]'
def WREG(r): return f'a[{8*r}:{8*r+7}]' if r < 32 else f'v[{80+8*(r-32)}:{87+8*(r-32)}]'
def WREG2(r, m): return f'a[{8*r+2*m}:{8*r+2*m+1}]' if r < 32 else f'v[{80+8*(r-32)+2*m}:{81+8*(r-32)+2*m}]'
SRD = 's[4:7]'
sW, sH, sX, sS, sT = 's12', 's13', 's14', 's15', 's16'
sNEAR = 's17'
sRD = 's18'
sKB = 's19'
sPL, sPR = 's20', 's21'
sZL, sZR = 's22', 's23'
sIW, sIW4 = 's24', 's25'
sIR = 's27'
sKV = 's29'
sFK = 's31'
sEX, sFX = 's32', 's33'
sC = 's34'
sA, sB, sD = 's35', 's36', 's37'
sSPIN = 's38'
sKW = 's39'
mLO, mHI, mK = 's[40:41]', 's[42:43]', 's[44:45]'
sT0 = 's50'
SPIN_MAX = 1 << 20
L_QX, L_OX, L_KXC = L_MEML, L_MEML + 2048, L_MEMR

class Cnt:
    def __init__(self, a, name, cap): self.a, self.name, self.cap, self.n, self.tags, self.done = a, name, cap, 0, {}, 0
    def issue(self, text, tag=None):
        self.a(text); self.n += 1
        if tag is not None: self.tags[tag] = self.n
    def wait(self, tag):
        if self.tags[tag] <= self.done: return
        k = min(self.n - self.tags[tag], self.cap)
        self.done = self.n - k
        self.a(f's_waitcnt {self.name}({k})')
    def wait0(self): self.done = self.n; self.a(f's_waitcnt {self.name}(0)')

LDS_SEQ = [('k', 0, 1), ('v', 0, 0), ('k', 0, 0), ('v', 0, 1)]
for b in range(1, 5): LDS_SEQ += [('k', b, 1), ('v', b, 0), ('v', b, 1)]
REG_OPS = [('q', 'L', b, t) for b in range(5) for t in range(2)] + [('k', 'L', b, 0) for b in range(1, 5)]
REG_OPS += [(m, 'R', b, t) for m in 'qkv' for b in range(5) for t in range(2)]
REG_OPS += [('o', 'O', be, t) for be in range(2) for t in range(5)]
assert len(REG_OPS) == 54 and len(LDS_SEQ) == 16
RIDX = {op: i for i, op in enumerate(REG_OPS)}
ACC = {('q', 0): 0, ('q', 1): 1, ('k', 0): 2, ('k', 1): 3, ('v', 0): 4, ('v', 1): 5}

def lanebits(a, dst, tmp, spec, base=0, lane='v79'):
    first = True
    for (pos, nb, wt) in spec:
        a(f'v_bfe_u32 {tmp}, {lane}, {pos}, {nb}')
        if first:
            a(f'v_mul_u32_u24 {dst}, {wt}, {tmp}'); first = False
        else:
            a(f'v_mul_u32_u24 {tmp}, {wt}, {tmp}')
            a(f'v_add_u32 {dst}, {dst}, {tmp}')
    if base: a(f'v_add_u32 {dst}, {base}, {dst}')

def prologue(a, st):
    t0 = 'v78'
    a(f'''
    s_mov_b32 {sC}, {hex(fbits(128 ** -0.5 * math.log2(math.e)))}
    s_mov_b32 s40, 0x00ff00ff
    s_mov_b32 s41, 0x00ff00ff
    s_mov_b32 s42, 0xff00ff00
    s_mov_b32 s43, 0xff00ff00
    s_mov_b32 s44, 0x33333333
    s_mov_b32 s45, 0x33333333
    s_mov_b32 {sKW}, {(L_KXC - 2 * L_QX) & 0xffffffff}
    s_load_dwordx4 s[72:75], s[0:1], 16
    s_load_dwordx4 s[76:79], s[0:1], 32
    v_bfe_u32 {t0}, v79, 1, 1
    v_mul_u32_u24 {t0}, 0xaaaa, {t0}
    v_add_u32 {vIDX}, 0x4444, {t0}
    v_lshlrev_b32 {vL}, 4, v79
    s_lshl_b32 {sA}, {sW}, 15
    v_add_u32 {vWB}, {sA}, {vL}
    v_add_u32 {vL}, {L_KX}, {vL}
    s_and_b32 {sA}, {sW}, 1
    s_mul_i32 {sA}, {sA}, 2560
    v_add_u32 {vH4}, {sA}, {vL}
    s_add_u32 {sA}, {sA}, {2048 + L_KX}
    v_lshl_add_u32 {vH2}, v79, 3, {sA}
    ''')
    lanebits(a, vAG, t0, [(4, 2, 256), (1, 1, 128), (2, 2, 32), (0, 1, 16)], L_MEML)
    lanebits(a, vAF, t0, [(2, 2, 256), (1, 1, 128), (0, 1, 16)], L_MEML)
    a(f'''
    v_bfe_u32 v77, v79, 3, 1
    v_bfe_u32 v76, v79, 2, 1
    v_xor_b32 v76, v76, v77
    v_lshl_add_u32 v77, v76, 1, v77
    v_bfe_u32 v76, v79, 4, 2
    v_xor_b32 v77, v77, v76
    v_lshl_add_u32 {vAF}, v77, 5, {vAF}
    ''')
    lanebits(a, vTQ, t0, [(5, 1, 256), (4, 1, 64), (2, 2, 16), (0, 1, 8)], L_QX)
    lanebits(a, vTK, t0, [(5, 1, 512), (0, 5, 8)], L_KXC)
    lanebits(a, vQW, t0, [(0, 4, 16), (4, 2, 4)], L_QX)
    lanebits(a, vOW, t0, [(3, 1, 256), (5, 1, 128), (0, 3, 16), (4, 1, 8)], L_OX)
    a(f's_lshl_b32 {sA}, {sW}, 9\nv_add_u32 {vQW}, {sA}, {vQW}\nv_add_u32 {vOW}, {sA}, {vOW}')
    lanebits(a, vST, t0, [(3, 1, 4096), (0, 3, 16), (4, 2, 8192)])
    lanebits(a, vPV, t0, [(4, 2, 512), (0, 4, 16)])
    a(f'''
    s_mov_b32 {sT}, {sH}
    s_cmp_eq_u32 {sW}, 0
    s_cbranch_scc1 L_ch_task
    s_mov_b32 {sT}, -1
    s_cmp_eq_u32 {sW}, 1
    s_cbranch_scc0 L_ch_task
    s_and_b32 {sA}, {sH}, 3
    s_cmp_eq_u32 {sA}, 0
    s_cbranch_scc0 L_ch_task
    s_lshr_b32 {sT}, {sH}, 2
    s_add_u32 {sT}, {sT}, 32
    L_ch_task:
    s_bfe_u32 {sA}, {sT}, {(1 << 16) | 2}
    s_bfe_u32 {sB}, {sT}, {(1 << 16) | 1}
    s_xor_b32 {sB}, {sB}, {sA}
    s_lshl_b32 {sB}, {sB}, 1
    s_add_u32 {sA}, {sA}, {sB}
    s_lshl_b32 {sA}, {sA}, 5
    s_cmp_ge_u32 {sT}, 32
    s_cselect_b32 {sA}, 0, {sA}
    ''')
    lanebits(a, vSP, t0, [(0, 3, 16), (4, 1, 8), (5, 1, 4)])
    a(f'v_xor_b32 {vSP}, {sA}, {vSP}')
    for reg, stride in (('v76', 8192), ('v75', 1280)):
        lanebits(a, reg, t0, [(4, 1, 16 * stride), (2, 1, 8 * stride), (3, 1, 4 * stride), (5, 1, 2 * stride), (1, 1, stride), (0, 1, 16)])
    a(f'''
    s_lshl_b32 {sA}, {sW}, 15
    v_lshl_add_u32 v74, v79, 3, {sA}
    s_waitcnt lgkmcnt(0)
    ''')
    for i, p in enumerate((72, 74, 76, 78)):
        a(f's_mov_b32 s{80+4*i}, s{p}\ns_mov_b32 s{81+4*i}, s{p+1}\ns_mov_b32 s{82+4*i}, {640*4096*2}\ns_mov_b32 s{83+4*i}, 0x20000')
    a(f'''
    s_lshl_b32 {sA}, {sH}, 8
    s_lshl_b32 {sB}, {sW}, 6
    s_add_u32 {sA}, {sA}, {sB}
    s_mul_i32 {sB}, {sX}, {320 * 8192}
    s_add_u32 s96, {sA}, {sB}
    s_sub_u32 {sB}, {320 * 8192}, {sB}
    s_add_u32 s97, {sA}, {sB}
    s_mul_i32 {sA}, {sH}, {128 * 1280}
    s_mul_i32 {sB}, {sX}, 640
    s_add_u32 {sA}, {sA}, {sB}
    s_lshl_b32 {sB}, {sW}, 7
    s_add_u32 s98, {sA}, {sB}
    s_lshl_b32 {sB}, {sW}, 5
    s_add_u32 s99, {sA}, {sB}
    s_add_u32 s99, s99, 512
    s_lshl_b32 s100, {sW}, 15
    ''')
    a(f'''
    v_mov_b64 {QP(0,0)}, -1
    v_mov_b64 {QP(0,2)}, -1
    s_cmp_eq_u32 {sT}, -1
    s_cbranch_scc1 L_ch_noclr
    s_mul_i32 {sA}, {sX}, {2 * INB_SLOT}
    s_lshl_b32 {sB}, {sT}, 12
    s_add_u32 {sA}, {sA}, {sB}
    s_add_u32 {sA}, {sA}, {OFF_INB - L_KX}
    s_add_u32 {sB}, {sA}, {INB_SLOT}
    ''')
    for s in (sA, sB):
        for k in range(4): a(f'buffer_store_dwordx4 {Q(0)}, {vL}, {SRD}, {s} offen offset:{1024*k} {st}')
    a(f'''
    s_lshl_b32 {sD}, {sT}, 7
    s_lshl_b32 {sA}, {sX}, 15
    s_add_u32 {sA}, {sA}, {sD}
    s_add_u32 {sA}, {sA}, {OFF_H1L}
    s_lshl_b32 {sB}, {sX}, 14
    s_add_u32 {sB}, {sB}, {sD}
    s_add_u32 {sB}, {sB}, {OFF_H1R}
    ''')
    lanebits(a, Q(1, 0), t0, [(0, 3, 16), (3, 1, 8192), (4, 2, 32768)])
    for k in range(16):
        a(f'buffer_store_dwordx4 {Q(0)}, {Q(1,0)}, {SRD}, {sB} offen sc1\ns_add_u32 {sB}, {sB}, {4 * 32768}')
    a(f's_mov_b64 exec, {mLO}')
    for k in range(4):
        a(f'buffer_store_dword {Q(0,0)}, {vSP}, {SRD}, {sA} offen {st}\ns_add_u32 {sA}, {sA}, 8192')
    a('s_mov_b64 exec, -1\nL_ch_noclr:\ns_waitcnt vmcnt(0)')

def load_weights(a):
    ops = [(m, hf, b, t) for (m, hf, b, t) in REG_OPS] + [(m, 'L', b, t) for (m, b, t) in LDS_SEQ]
    N = len(ops)
    def dma(n):
        m, hf, b, t = ops[n]
        slot = (n - 54) % 16
        for z in range(2):
            if m == 'o':
                base = 's99' if t == 4 else 's98'
                off = (64 * b + 32 * z) * 1280 + (0 if t == 4 else 32 * t)
                srd, va = 's[92:95]', 'v75'
            else:
                base = 's96' if hf == 'L' else 's97'
                off = (64 * b + 32 * z) * 8192 + 32 * t
                srd, va = {'q': 's[80:83]', 'k': 's[84:87]', 'v': 's[88:91]'}[m], 'v76'
            a(f's_add_u32 m0, s100, {slot * 2048 + z * 1024}\ns_add_u32 {sA}, {base}, {off}')
            a(f'buffer_load_dwordx4 {va}, {srd}, {sA} offen lds')
    for n in range(16): dma(n)
    for n in range(N):
        slot = (n - 54) % 16
        infl = min(N - 1 - n, 15)
        a(f's_waitcnt vmcnt({2 * infl})')
        for m in range(4):
            dst = WREG2(n, m) if n < 54 else f'v[{QB+2*m}:{QB+1+2*m}]'
            a(f'ds_read_b64_tr_b16 {dst}, v74 offset:{slot * 2048 + m * 512}')
        a('s_waitcnt lgkmcnt(0)')
        if n >= 54:
            a(f'ds_write_b128 {vWB}, {Q(0)} offset:{slot * 2048}\nds_write_b128 {vWB}, {Q(1)} offset:{slot * 2048 + 1024}\ns_waitcnt lgkmcnt(0)')
        if n + 16 < N: dma(n + 16)

def publish_mem0(a, st):
    a(f'''
    s_cmp_eq_u32 {sT}, -1
    s_cbranch_scc1 L_ch_nom0
    s_load_dwordx2 s[72:73], s[0:1], 8
    s_waitcnt lgkmcnt(0)
    s_mov_b32 s80, s72
    s_mov_b32 s81, s73
    s_mov_b32 s82, 10240
    s_mov_b32 s83, 0x20000
    ''')
    lanebits(a, Q(1, 0), Q(1, 1), [(0, 3, 1280), (4, 1, 8), (5, 1, 4)])
    lanebits(a, Q(2, 0), Q(1, 1), [(0, 1, 1280), (1, 2, 32), (4, 1, 8), (5, 1, 4)])
    a(f'''
    s_lshl_b32 {sB}, {sT}, 4
    s_cmp_ge_u32 {sT}, 32
    s_cbranch_scc1 L_ch_m0b
    v_mov_b32 {Q(1,0)}, {Q(2,0)}
    s_lshr_b32 {sB}, {sT}, 3
    s_lshl_b32 {sB}, {sB}, 7
    s_and_b32 {sA}, {sT}, 1
    s_lshl_b32 {sA}, {sA}, 4
    s_add_u32 {sB}, {sB}, {sA}
    s_bfe_u32 {sA}, {sT}, {(2 << 16) | 1}
    s_mul_i32 {sA}, {sA}, 2560
    s_add_u32 {sB}, {sB}, {sA}
    L_ch_m0b:
    s_mul_i32 {sA}, {sX}, 640
    s_add_u32 {sA}, {sA}, {sB}
    buffer_load_dword {Q(1,2)}, {Q(1,0)}, s[80:83], {sA} offen
    s_lshl_b32 {sD}, {sT}, 7
    s_lshl_b32 {sA}, {sX}, 15
    s_add_u32 {sA}, {sA}, {sD}
    s_add_u32 {sA}, {sA}, {OFF_H1L}
    s_lshl_b32 {sB}, {sX}, 14
    s_add_u32 {sB}, {sB}, {sD}
    s_add_u32 {sB}, {sB}, {OFF_H1R}
    s_add_u32 {sB}, {sB}, {sNEAR}
    s_waitcnt vmcnt(0)
    v_min_u32 {Q(1,2)}, -2, {Q(1,2)}
    s_mov_b64 exec, {mLO}
    buffer_store_dword {Q(1,2)}, {vSP}, {SRD}, {sA} offen {st}
    buffer_store_dword {Q(1,2)}, {vSP}, {SRD}, {sB} offen sc1
    s_mov_b64 exec, -1
    L_ch_nom0:
    ''')

sRR = 's26'
sM0K, sM0F, sKN, sVX, sOK, sEXA, sTV = 's28', 's30', 's46', 's47', 's96', 's98', 's97'
def scalars0():
    return f'''
    s_lshl_b32 {sFK}, {sH}, 7
    s_add_u32 {sFK}, {sFK}, {OFF_FKV}
    s_lshl_b32 {sM0F}, {sW}, 8
    s_add_u32 {sM0F}, {sM0F}, {L_SPARE}
    s_lshl_b32 {sA}, {sH}, 1
    s_add_u32 {sA}, {sA}, {sX}
    s_lshl_b32 {sFX}, {sA}, 7
    s_add_u32 {sFX}, {sFX}, {OFF_FEX}
    s_mov_b32 {sOK}, 0
    '''
def scalars():
    return f'''
    s_and_b32 {sA}, {sS}, 3
    s_lshl_b32 {sB}, {sX}, 2
    s_add_u32 {sD}, {sA}, {sB}
    s_lshl_b32 {sRD}, {sD}, 13
    s_add_u32 {sRD}, {sRD}, {OFF_H1L - L_KX}
    s_add_u32 {sA}, {sS}, 1
    s_and_b32 {sA}, {sA}, 3
    s_add_u32 {sD}, {sA}, {sB}
    s_lshl_b32 {sPL}, {sD}, 13
    s_xor_b32 {sD}, {sD}, 2
    s_lshl_b32 {sZL}, {sD}, 13
    s_lshl_b32 {sA}, {sT}, 7
    s_add_u32 {sB}, {sA}, {OFF_H1L}
    s_add_u32 {sPL}, {sPL}, {sB}
    s_add_u32 {sZL}, {sZL}, {sB}
    s_lshl_b32 {sB}, {sS}, 1
    s_add_u32 {sB}, {sB}, {sX}
    s_lshl_b32 {sB}, {sB}, 14
    s_add_u32 {sB}, {sB}, {sNEAR}
    s_add_u32 {sPR}, {sB}, {sA}
    s_add_u32 {sPR}, {sPR}, {OFF_H1R + 32768}
    s_xor_b32 {sRR}, {sB}, 16384
    s_add_u32 {sRR}, {sRR}, {OFF_H1R - L_KX}
    s_and_b32 {sA}, {sS}, 1
    s_lshl_b32 {sKB}, {sA}, 13
    s_lshl_b32 {sB}, {sX}, 1
    s_add_u32 {sA}, {sA}, {sB}
    s_mul_i32 {sA}, {sA}, {INB_SLOT}
    s_lshl_b32 {sD}, {sT}, 12
    s_add_u32 {sD}, {sD}, {OFF_INB - L_KX}
    s_add_u32 {sIR}, {sA}, {sD}
    s_lshl_b32 {sD}, {sH}, 7
    s_add_u32 {sA}, {sA}, {sD}
    s_add_u32 {sA}, {sA}, {OFF_INB}
    s_lshl_b32 {sD}, {sW}, 15
    s_add_u32 {sIW}, {sA}, {sD}
    s_lshl_b32 {sD}, {sW}, 13
    s_add_u32 {sIW4}, {sA}, {sD}
    s_add_u32 {sIW4}, {sIW4}, {32 * 4096}
    s_lshl_b32 {sA}, {sS}, 5
    s_add_u32 {sA}, {sA}, {sH}
    s_lshl_b32 {sKV}, {sA}, 14
    s_lshl_b32 {sD}, {sW}, 11
    s_add_u32 {sKV}, {sKV}, {sD}
    s_add_u32 {sKV}, {sKV}, {OFF_KV}
    s_add_u32 {sVX}, {sKV}, 8192
    s_add_u32 {sTV}, {sKV}, {8192 - 2 * L_KX}
    s_add_u32 {sKN}, {sKV}, {32 * 16384}
    s_xor_b32 {sM0K}, {sKB}, 8192
    s_add_u32 {sM0K}, {sM0K}, {sD}
    s_add_u32 {sM0K}, {sM0K}, {L_KX}
    s_lshl_b32 {sEX}, {sA}, 13
    s_add_u32 {sEX}, {sEX}, {OFF_EX}
    s_lshl_b32 {sD}, {sW}, 10
    s_add_u32 {sB}, {sEX}, {sD}
    s_sub_u32 {sB}, {sB}, {L_KX}
    s_lshl_b32 {sD}, {sW}, 9
    s_add_u32 {sEXA}, {sEX}, {sD}
    s_add_u32 {sEXA}, {sEXA}, {4096 - L_KX // 2}
    s_cmp_eq_u32 {sX}, 0
    s_cselect_b32 {sEXA}, {sB}, {sEXA}
    '''

def kv_ok(a, q):
    a(f'''
    v_min3_u32 {Q(q,0)}, {Q(q,0)}, {Q(q,1)}, {Q(q,2)}
    v_min3_u32 {Q(q+1,0)}, {Q(q+1,0)}, {Q(q+1,1)}, {Q(q+1,2)}
    v_min_u32 {Q(q,0)}, {Q(q,0)}, {Q(q,3)}
    v_min_u32 {Q(q+1,0)}, {Q(q+1,0)}, {Q(q+1,3)}
    v_lshlrev_b32 {Q(q,0)}, 1, {Q(q,0)}
    v_lshl_add_u32 {Q(q+1,0)}, {Q(q+1,0)}, 1, 1
    v_min_u32 {Q(q,0)}, {Q(q,0)}, {Q(q+1,0)}
    v_readfirstlane_b32 {sOK}, {Q(q,0)}
    ''')
def kvwait(a, tag, q, need):
    a(f'''
    s_mov_b32 {sSPIN}, 0
    L_fw_{tag}:
    s_cmp_ge_u32 {sOK}, {need}
    s_cbranch_scc1 L_fw_{tag}_ok
    buffer_load_dwordx4 {Q(q)}, off, {SRD}, {sFK} sc1
    buffer_load_dwordx4 {Q(q+1)}, off, {SRD}, {sFK} offset:16 sc1
    s_add_u32 {sSPIN}, {sSPIN}, 1
    s_cmp_ge_u32 {sSPIN}, {SPIN_MAX}
    s_cbranch_scc1 L_err
    s_waitcnt vmcnt(0)
    ''')
    kv_ok(a, q)
    a(f's_branch L_fw_{tag}\nL_fw_{tag}_ok:')

def addcvt(src, dst):
    return [f'v_add_f32 {Q(src,0)}, {Q(src,0)}, {Q(src,2)}', f'v_add_f32 {Q(src,1)}, {Q(src,1)}, {Q(src,3)}',
            f'v_cvt_pk_bf16_f32 {dst}, {Q(src,0)}, {Q(src,1)}']

def smf(acc, af, w): return f'v_smfmac_f32_16x16x64_bf16 {Q(acc)}, {Q(af)}, {w}, {vIDX}'
def mf(d, A, B, c): return f'v_mfma_f32_16x16x32_bf16 {Q(d)}, {Q(A)}, {Q(B)}, {c if c == 0 else Q(d)}'
def mf16(d, A, B): return f'v_mfma_f32_16x16x16_bf16 {Q(d)}, {A}, {B}, {Q(d)}'

def chain_loop(a, tag, st, opt):
    stamp = opt.get('stamp', False)
    clk = 's_memtime'
    marks = opt.get('marks')
    NAMES = ['barA', 'barB', 'Ldone', 'Qdone', 'Kdone', 'Vdone', 'Sdone', 'Pdone', 'barF', 'stores', 'publ', 'gate']
    def ST(i):
        lst = marks or NAMES
        if stamp and i in lst:
            k = lst.index(i); a(f'{clk} s[{52+2*k}:{53+2*k}]')
    def CNT(k):
        if stamp: a(f's_add_u32 s{93+k}, s{93+k}, {sSPIN}')
    def ST0(init=False):
        if not stamp: return
        a(f'{clk} s[76:77]\ns_waitcnt lgkmcnt(0)')
        for i in range(13):
            if init: a(f's_mov_b32 s{80+i}, 0\ns_mov_b32 s{52+2*i}, s76')
            elif opt.get('snap'):
                if i == 0: a(f's_cmp_eq_u32 {sS}, {opt["snap"]}')
                a(f's_cselect_b32 s{80+i}, s{52+2*i}, s{80+i}')
            else: a(f's_sub_u32 s78, s{52+2*i}, {sT0}\ns_add_u32 s{80+i}, s{80+i}, s78')
        if init: a('s_mov_b32 s93, 0\ns_mov_b32 s94, 0\ns_mov_b32 s95, 0')
        a(f's_mov_b32 {sT0}, s76')
    lg = Cnt(a, 'lgkmcnt', 15); vm = Cnt(a, 'vmcnt', 63)
    R1 = opt.get('R1', 20)
    R2 = opt.get('R2', 5)
    gate = opt.get('gate', True)
    dbl1 = opt.get('dbl1', False); dbl2 = opt.get('dbl2', False)
    STG = [8, 10, 12]
    def run(o): o() if callable(o) else a(o)
    def spin(): a(f's_add_u32 {sSPIN}, {sSPIN}, 1\ns_cmp_ge_u32 {sSPIN}, {SPIN_MAX}\ns_cbranch_scc1 L_err')
    def stage(j):
        s = STG[j % 3]
        lg.issue(f'ds_read_b128 {Q(s)}, {vWB} offset:{j * 2048}')
        lg.issue(f'ds_read_b128 {Q(s+1)}, {vWB} offset:{j * 2048 + 1024}', f'L{j}')
    def zero(n): a(f'v_mov_b64 {QP(n,0)}, 0\nv_mov_b64 {QP(n,2)}, 0')
    HS = [(14, 15, X0, X1, XP), (6, 7, Q(12, 0), Q(12, 1), QP(12, 0))]
    def hload(h):
        qa, qb, x0, x1, xp = HS[h]
        a(f'''
        buffer_load_dwordx4 {Q(qa)}, {vH4}, {SRD}, {sRD} offen sc1
        buffer_load_dwordx4 {Q(qb)}, {vH4}, {SRD}, {sRD} offen offset:1024 sc1
        buffer_load_dwordx2 {xp}, {vH2}, {SRD}, {sRD} offen sc1
        ''')
    def hcheck(h, younger):
        qa, qb, x0, x1, xp = HS[h]
        tmp = Q(13, 0)
        a(f'''
        s_waitcnt vmcnt({younger + 2})
        v_max3_u32 {tmp}, {Q(qa,0)}, {Q(qa,1)}, {Q(qa,2)}
        s_waitcnt vmcnt({younger + 1})
        v_max3_u32 {tmp}, {tmp}, {Q(qa,3)}, {Q(qb,0)}
        v_max3_u32 {tmp}, {tmp}, {Q(qb,1)}, {Q(qb,2)}
        s_waitcnt vmcnt({younger})
        v_max3_u32 {tmp}, {tmp}, {Q(qb,3)}, {x0}
        v_max_u32 {tmp}, {tmp}, {x1}
        v_cmp_eq_u32 vcc, -1, {tmp}
        ''')
    def hwrite(h):
        qa, qb, x0, x1, xp = HS[h]
        a(f'''
        ds_write_b128 {vH4}, {Q(qa)} offset:{L_MEML - L_KX}
        ds_write_b128 {vH4}, {Q(qb)} offset:{L_MEML - L_KX + 1024}
        ds_write_b64 {vH2}, {xp} offset:{L_MEML - L_KX}
        ''')
    RA4, RA1 = Q(15, 0), Q(15, 1)
    def raddr():
        a(f's_lshl_b32 {sA}, {sW}, 10\nv_add_u32 {RA4}, {sA}, {vL}')
        a(f's_lshl_b32 {sA}, {sW}, 8\ns_add_u32 {sA}, {sA}, {4096 + L_KX - L_KX // 4}\nv_lshrrev_b32 {RA1}, 2, {vL}\nv_add_u32 {RA1}, {sA}, {RA1}')
    def rload():
        a(f'buffer_load_dwordx4 {Q(14)}, {RA4}, {SRD}, {sRR} offen sc1\nbuffer_load_dword {X0}, {RA1}, {SRD}, {sRR} offen sc1')
    def kpat(): a(f'v_and_b32 {X0}, 128, {vPV}\nv_add_u32 {X0}, {X0}, {vPV}')
    a(scalars0()); a(scalars())
    kvwait(a, tag + 'k0', 6, 1)
    kpat()
    a(f'''
    s_xor_b32 m0, {sM0K}, 8192
    s_add_u32 {sB}, {sKV}, 128
    buffer_load_dwordx4 {X0}, {SRD}, {sKV} offen sc1 lds
    s_add_u32 m0, m0, 1024
    v_mov_b32 {Q(7,0)}, {sM0F}
    buffer_load_dwordx4 {X0}, {SRD}, {sB} offen sc1 lds
    v_mov_b32 {Q(6,0)}, 0
    ds_write_b32 {Q(7,0)}, {Q(6,0)}
    ds_write_b32 {Q(7,0)}, {Q(6,0)} offset:16
    s_waitcnt vmcnt(0) lgkmcnt(0)
    ''')
    if gate: a(f's_cmp_ge_u32 {sW}, 2\ns_cbranch_scc1 L_{tag}_e0\ns_barrier\nL_{tag}_e0:')
    ST0(True)
    a(f'L_{tag}_step:')
    for n in range(6): zero(n)
    for j in range(2): stage(j)
    a(f's_cmp_ge_u32 {sW}, 2\ns_cbranch_scc1 L_{tag}_loc')
    raddr()
    a(f's_waitcnt lgkmcnt(0)\ns_branch L_{tag}_barA')
    a(f'''
    L_{tag}_loc:
    s_add_u32 {sB}, {sS}, 2
    s_min_u32 {sB}, {sB}, 64
    s_cmp_ge_u32 {sOK}, 64
    s_cbranch_scc1 L_{tag}_fok
    s_cmp_eq_u32 {sW}, 2
    s_cbranch_scc0 L_{tag}_fok
    v_mov_b32 {Q(14,0)}, {sM0F}
    s_waitcnt vmcnt(0)
    ds_read_b128 {Q(6)}, {Q(14,0)}
    ds_read_b128 {Q(7)}, {Q(14,0)} offset:16
    s_waitcnt lgkmcnt(0)
    ''')
    kv_ok(a, 6)
    kvwait(a, tag + 'kn', 6, sB)
    a(f'L_{tag}_fok:\ns_mov_b32 {sSPIN}, 0')
    if gate: a('s_barrier')
    for _ in range(opt.get('gd', 0)): a('s_nop 15')
    ST('gate')
    if not dbl1:
        a(f'L_{tag}_p1:'); ST('p1iss')
        hload(0); spin(); hcheck(0, 0)
        a(f's_cbranch_vccnz L_{tag}_p1')
        ST('p1ok'); CNT(1)
        hwrite(0); raddr()
        a('s_waitcnt lgkmcnt(0)')
    else:
        hload(0)
        a(f's_nop 15\ns_nop 15\nL_{tag}_p1:')
        hload(1); spin(); hcheck(0, 3)
        a(f's_cbranch_vccz L_{tag}_p1a')
        hload(0); hcheck(1, 3)
        a(f's_cbranch_vccnz L_{tag}_p1')
        hwrite(1)
        a(f's_branch L_{tag}_p1b\nL_{tag}_p1a:')
        hwrite(0)
        a(f'L_{tag}_p1b:')
        ST('p1ok'); CNT(1)
        a('s_waitcnt vmcnt(0)'); raddr()
        a('s_waitcnt lgkmcnt(0)')
    a(f'L_{tag}_barA:\ns_barrier')
    ST('barA')
    lg.n = 0; lg.done = 0; lg.tags = {'L0': 0, 'L1': 0}
    AFL = [6, 7, 6, 7, 6]; AFR = [14, 15, 7, 10, 11]
    def afl(b): lg.issue(f'ds_read_b128 {Q(AFL[b])}, {vAF if b < 4 else vAG} offset:{1024 * b}', f'AL{b}')
    def afr(b): lg.issue(f'ds_read_b128 {Q(AFR[b])}, {vAF if b < 4 else vAG} offset:{L_MEMR - L_MEML + 1024 * b}', f'AR{b}')
    if opt.get('rpub') == 'barA':
        a(f'''
        s_cmp_eq_u32 {sT}, -1
        s_cbranch_scc1 L_{tag}_norp
        s_cmp_eq_u32 {sS}, 0
        s_cbranch_scc1 L_{tag}_norp
        s_sub_u32 {sA}, {sPR}, 32768
        s_mov_b64 exec, {mLO}
        buffer_store_dword {Q(13,3)}, {vSP}, {SRD}, {sA} offen sc1
        s_mov_b64 exec, -1
        L_{tag}_norp:
        ''')
    afl(0); stage(2); afl(1)
    RL0 = opt.get('RL0', 0)
    if RL0 == 0: rload()
    state = dict(bar=False, free={0, 1}, done=set())
    def tryafr():
        if state['bar']:
            for bb in sorted(state['free'] - state['done']): afr(bb); state['done'].add(bb)
    def r_write():
        ST('p2beg')
        a(f'L_{tag}_p2:\ns_waitcnt vmcnt(0)')
        lg.issue(f'ds_write_b128 {RA4}, {Q(14)} offset:{L_MEMR - L_KX}')
        lg.issue(f'ds_write_b32 {RA1}, {X0} offset:{L_MEMR - L_KX}', 'RW')
        a(f'v_max3_u32 {X1}, {Q(14,0)}, {Q(14,1)}, {Q(14,2)}')
    def r_chk1(): a(f'v_max3_u32 {X1}, {X1}, {Q(14,3)}, {X0}')
    def r_chk2(): a(f'v_cmp_eq_u32 vcc, -1, {X1}')
    def r_br():
        if opt.get('rpub') != 'none': a(f's_cbranch_vccnz L_{tag}_p2slow')
        a(f'L_{tag}_p2ok:'); ST('p2ok')
    def barB():
        lg.wait('RW'); a('s_barrier'); ST('barB'); state['bar'] = True
    kitems = [f'v_and_b32 {X1}, 128, {vPV}\ns_mov_b32 m0, {sM0K}',
          f'v_add_u32 {X1}, {X1}, {vPV}\ns_add_u32 {sB}, {sKN}, 128',
          lambda: (vm.issue(f'buffer_load_dwordx4 {X1}, {SRD}, {sKN} offen sc1 lds'), a('s_add_u32 m0, m0, 1024')),
          lambda: vm.issue(f'buffer_load_dwordx4 {X1}, {SRD}, {sB} offen sc1 lds')]
    titems = [f'v_lshlrev_b32 {X1}, 1, {vL}\ns_mov_b32 m0, {sM0F}\ns_add_u32 m0, m0, 1024',
              f'buffer_load_dword {X1}, {SRD}, {sTV} offen sc1 lds']
    early_k = opt.get('early_k', True)
    ev = {R1: [r_write], R1 + 1: [r_chk1], R1 + 2: [r_chk2], R1 + 3: [r_br]}
    nxt = R1 + 4
    if RL0: ev.setdefault(RL0, []).append(rload)
    if opt.get('touch', True):
        for it in titems: ev.setdefault(nxt, []).append(it); nxt += 1
    if early_k:
        for it in kitems: ev.setdefault(nxt, []).append(it); nxt += 1
    ev.setdefault(R1 + R2, []).insert(0, barB)
    j = 0; nop = 0
    for b in range(5):
        order = [('q', 0), ('k', 1), ('q', 1), ('v', 0), ('k', 0), ('v', 1)]
        lg.wait(f'AL{b}')
        for n, (m, t) in enumerate(order):
            if (m, b, t) in LDS_SEQ:
                assert LDS_SEQ[j] == (m, b, t)
                lg.wait(f'L{j}')
                a(smf(ACC[(m, t)], AFL[b], Q8(STG[j % 3])))
                if j + 3 < 16: stage(j + 3)
                if j == 13: state['free'] |= {3, 4}
                j += 1
            else:
                a(smf(ACC[(m, t)], AFL[b], WREG(RIDX[(m, 'L', b, t)])))
            nop += 1
            if nop in ev:
                for o in ev.pop(nop): run(o)
            if b == 3 and n == 5: state['free'].add(2)
            tryafr()
        if b + 2 < 5: afl(b + 2)
    for k in sorted(ev):
        for o in ev[k]: run(o)
    tryafr()
    assert len(state['done']) == 5
    ST('Ldone')
    vm.n = 0; vm.done = 0; vm.tags = {}
    VX = [12, 13]
    def misc():
        a(f'''
        s_cmp_eq_u32 {sW}, 3
        s_cbranch_scc0 L_{tag}_m1
        v_mov_b32 {X0}, {sS}
        s_mov_b64 exec, 1
        buffer_store_dword {X0}, off, {SRD}, {sFX} sc1
        s_mov_b64 exec, -1
        L_{tag}_m1:
        s_cmp_eq_u32 {sW}, 2
        s_cbranch_scc0 L_{tag}_m2
        s_cmp_ge_u32 {sOK}, 64
        s_cbranch_scc1 L_{tag}_m2
        s_mov_b32 m0, {sM0F}
        v_lshrrev_b32 {X0}, 2, {vL}
        s_sub_u32 {sA}, {sFK}, {L_KX // 4}
        s_mov_b64 exec, 255
        buffer_load_dword {X0}, {SRD}, {sA} offen sc1 lds
        s_mov_b64 exec, -1
        L_{tag}_m2:
        ''')
    bg = [lambda: vm.issue(f'buffer_load_dwordx4 {Q(VX[0])}, {vPV}, {SRD}, {sVX} offen sc1'),
          lambda: vm.issue(f'buffer_load_dwordx4 {Q(VX[1])}, {vPV}, {SRD}, {sVX} offen offset:256 sc1', 'vx1')]
    if not early_k: bg += kitems
    bg += [misc]
    bg += ['s_nop 0'] * (10 - len(bg))
    if opt.get('nobg'): bg = [x if x is not misc else 's_nop 0' for x in bg]
    for b in range(5):
        lg.wait(f'AR{b}')
        for t in range(2):
            a(smf(ACC[('q', t)], AFR[b], WREG(RIDX[('q', 'R', b, t)])))
            run(bg[2 * b + t])
    ST('Qdone')
    QF = [6, 8, 9, 1]
    KS = [0, 3, 2, 7, 10, 11, 0, 3]
    KF = [2, 7, 10, 11]
    S0, S1, SM = 14, 15, 5
    def kx(f): lg.issue(f'ds_read_b128 {Q(KS[f])}, {X1} offset:{1024 * f}', f'KX{f}')
    def qfr(u):
        for e in range(2): lg.issue(f'ds_read_b64_tr_b16 {QP(QF[u], 2*e)}, {vTQ} offset:{u * 512 + e * 128}', f'QF{u}')
    def kfr(u):
        for e in range(2): lg.issue(f'ds_read_b64_tr_b16 {QP(KF[u], 2*e)}, {vTK} offset:{u * 1024 + e * 256}', f'KF{u}')
    kpass = [smf(ACC[('k', t)], AFR[b], WREG(RIDX[('k', 'R', b, t)])) for b in range(5) for t in range(2)]
    qa = addcvt(0, Q(0, 0)); qb = addcvt(1, Q(0, 1))
    kf = {0: [f'v_add_u32 {X1}, {sKB}, {vL}'], 1: [qa[0], qa[1]], 2: [qb[0], qb[1]],
          3: [qa[2], qb[2], lambda: lg.issue(f'ds_write2_b32 {vQW}, {Q(0,0)}, {Q(0,1)} offset0:0 offset1:64', 'qw')],
          4: [f'v_lshl_add_u32 {X0}, {vQW}, 1, {sKW}'],
          8: [lambda: lg.wait('qw'), 's_barrier', lambda: qfr(0)], 9: [lambda: kx(0)]}
    for n, m in enumerate(kpass):
        a(m)
        for o in kf.get(n, []): run(o)
    ST('Kdone')
    vpass = [smf(ACC[('v', t)], AFR[b], WREG(RIDX[('v', 'R', b, t)])) for b in range(5) for t in range(2)]
    ka = addcvt(2, Q(2, 0)); kb = addcvt(3, Q(2, 1))
    vf = {0: [lambda: qfr(1)], 1: [ka[0], ka[1], kb[0], kb[1], ka[2], kb[2], lambda: lg.issue(f'ds_write2_b32 {X0}, {Q(2,0)}, {Q(2,1)} offset0:0 offset1:128', 'kw')],
          2: [lambda: kx(1)], 3: [lambda: qfr(2)], 4: [lambda: qfr(3)], 5: [lambda: kx(3)],
          6: [lambda: lg.wait('kw'), 's_barrier', lambda: kx(2)], 7: [lambda: kx(4)], 9: [lambda: kx(5)]}
    for n, m in enumerate(vpass):
        a(m)
        for o in vf.get(n, []): run(o)
    ST('Vdone')
    va = addcvt(4, Q(4, 0)); vb = addcvt(5, Q(4, 1))
    vx = [va[0], va[1], vb[0], vb[1], va[2], vb[2], f's_lshl_b32 {sA}, {sW}, 10\nv_add_u32 {X0}, {sA}, {vTK}']
    for f in range(8):
        u, kp = f // 2, f % 2
        lg.wait(f'KX{f}'); lg.wait(f'QF{u}')
        a(mf([S0, S1][kp], KS[f], QF[u], 0 if u == 0 else 1))
        if f < 2: kx(6 + f)
        elif f < 6: kfr(f - 2)
        if f >= 1 and vx: a(vx.pop(0))
    M, M1 = X0, X1
    PX, PM, ONE, DA, DB, LA = 2, 7, 10, 6, 8, 9
    for u in range(4):
        lg.wait(f'KF{u}')
        a(mf(SM, KF[u], QF[u], 0 if u == 0 else 1))
        if u == 0:
            for e in range(2): lg.issue(f'ds_read_b64_tr_b16 {QP(0,2*e)}, {X0} offset:{256 * e}', 'exk')
        if u == 1: a(f'v_max3_f32 {M}, {Q(S0,0)}, {Q(S0,1)}, {Q(S0,2)}\nv_max3_f32 {M}, {M}, {Q(S0,3)}, {Q(S1,0)}')
        if u == 2: a(f'v_max3_f32 {M}, {M}, {Q(S1,1)}, {Q(S1,2)}\nv_max_f32 {M}, {M}, {Q(S1,3)}')
    def export(t2):
        if opt.get('noexp'):
            a(f'L_{tag}_exd{t2}:'); return
        a(f'''
        s_cmp_eq_u32 {sX}, 0
        s_cbranch_scc1 L_{tag}_exk{t2}
        v_lshrrev_b32 {Q(3,0)}, 1, {vL}
        buffer_store_dwordx2 {QP(4,0)}, {Q(3,0)}, {SRD}, {sEXA} offen sc1
        s_branch L_{tag}_exd{t2}
        L_{tag}_exk{t2}:
        s_mov_b64 exec, {mK}
        buffer_store_dwordx4 {Q(0)}, {vL}, {SRD}, {sEXA} offen sc1
        s_mov_b64 exec, -1
        L_{tag}_exd{t2}:
        ''')
    lg.wait('exk')
    export('a')
    if not opt.get('noexp'): vm.n += 1
    a(f's_cmp_eq_u32 {sS}, 63\ns_cbranch_scc1 L_{tag}_last')
    for r in range(4): a(f'v_mov_b32 {Q(ONE,r)}, 0x3f803f80')
    a(f'v_mov_b32 {Q(PM,1)}, 0\nv_mov_b32 {Q(PM,2)}, 0')
    ST('Sdone')
    TT = [1, 11, 14, 15, 5]
    a(f'''
    v_max3_f32 {M}, {M}, {Q(SM,0)}, {Q(SM,1)}
    v_mov_b32 {M1}, {M}
    v_mov_b64 {QP(TT[0],0)}, 0
    v_mov_b64 {QP(TT[0],2)}, 0
    v_permlane16_swap_b32 {M}, {M1}
    v_max_f32 {M}, {M}, {M1}
    v_mov_b32 {M1}, {M}
    v_mov_b64 {QP(TT[1],0)}, 0
    v_mov_b64 {QP(TT[1],2)}, 0
    v_permlane32_swap_b32 {M}, {M1}
    v_max_f32 {M}, {M}, {M1}
    v_mul_f32 {M}, {sC}, {M}
    ''')
    for s in (S0, S1):
        for r in range(4): a(f'v_fma_f32 {Q(s,r)}, {Q(s,r)}, {sC}, -{M}')
    for s in (S0, S1):
        for r in range(4): a(f'v_exp_f32 {Q(s,r)}, {Q(s,r)}')
    for k, s in enumerate((S0, S1)):
        for e in range(2): a(f'v_cvt_pk_bf16_f32 {Q(PX, 2*k+e)}, {Q(s,2*e)}, {Q(s,2*e+1)}')
    for r in range(2): a(f'v_fma_f32 {Q(SM,r)}, {Q(SM,r)}, {sC}, -{M}')
    vm.wait('vx1')
    ST('Pdone')
    a(mf(LA, ONE, PX, 0))
    a(f'v_exp_f32 {Q(SM,0)}, {Q(SM,0)}')
    a(mf(DA, VX[0], PX, 0))
    a(f'v_exp_f32 {Q(SM,1)}, {Q(SM,1)}')
    a(mf(DB, VX[1], PX, 0))
    a(f'v_cvt_pk_bf16_f32 {Q(PM,0)}, {Q(SM,0)}, {Q(SM,1)}\nv_cvt_pk_bf16_f32 {Q(PM,3)}, {Q(SM,0)}, {Q(SM,1)}')
    a(mf16(LA, QP(ONE, 0), QP(PM, 0)))
    zero(TT[2])
    a(mf16(DA, QP(4, 0), QP(PM, 0)))
    zero(TT[3])
    a(mf16(DB, QP(4, 0), QP(PM, 2)))
    a(f'v_rcp_f32 {M}, {Q(LA,0)}')
    zero(TT[4])
    for r in range(4): a(f'v_cndmask_b32 {Q(DA,r)}, {Q(DA,r)}, {Q(DB,r)}, {mHI}')
    for r in range(4): a(f'v_mul_f32 {Q(DA,r)}, {M}, {Q(DA,r)}')
    for e in range(2): a(f'v_cvt_pk_bf16_f32 {Q(DA,e)}, {Q(DA,2*e)}, {Q(DA,2*e+1)}')
    lg.issue(f'ds_write_b64 {vOW}, {QP(DA,0)}', 'ow')
    a(f'v_and_b32 {X0}, 0x1fff, {vST}\nv_lshrrev_b32 {X1}, 11, {vST}')
    lg.wait('ow'); a('s_barrier')
    OA = [12, 13]
    for be in range(2): lg.issue(f'ds_read_b128 {Q(OA[be])}, {vAG} offset:{L_OX - L_MEML + 1024 * be}', f'OA{be}')
    a(f'v_and_b32 {X1}, 12, {X1}\nv_add_u32 {X0}, {X0}, {X1}')
    ST('barF')
    wo = lambda t, be: smf(TT[t], OA[be], WREG(RIDX[('o', 'O', be, t)]))
    PK = 2
    lg.wait('OA0'); a(wo(4, 0)); a(wo(0, 0))
    lg.wait('OA1'); a(wo(4, 1)); a(wo(0, 1)); a(wo(1, 0))
    p4 = addcvt(TT[4], Q(TT[4], 0)); p0 = addcvt(TT[0], Q(PK, 0)); p1 = addcvt(TT[1], Q(PK, 1))
    a(p4[0]); a(p4[1])
    a(wo(1, 1)); a(p4[2])
    a(f'buffer_store_dword {Q(TT[4],0)}, {X0}, {SRD}, {sIW4} offen {st}')
    a(wo(2, 0)); a(p0[0]); a(p0[1])
    a(wo(2, 1)); a(p0[2])
    a(wo(3, 0)); a(p1[0]); a(p1[1])
    a(wo(3, 1)); a(p1[2])
    for o in addcvt(TT[2], Q(PK, 2)): a(o)
    for o in addcvt(TT[3], Q(PK, 3)): a(o)
    a(f'buffer_store_dwordx4 {Q(PK)}, {vST}, {SRD}, {sIW} offen {st}')
    ST('stores')
    a(f's_add_u32 {sS}, {sS}, 1\ns_cmp_eq_u32 {sT}, -1\ns_cbranch_scc1 L_{tag}_nored')
    RLS, SEL, D = [[6, 7, 14, 15], [8, 9, 10, 11]], 12, 5
    def iload(h):
        for k in range(4): a(f'buffer_load_dwordx4 {Q(RLS[h][k])}, {vL}, {SRD}, {sIR} offen offset:{1024*k} sc1')
    def ired(h, younger):
        RL = RLS[h]
        for k in range(4):
            a(f's_waitcnt vmcnt({younger+3-k})'); ST(f'rl{k}'); a(mf(D, RL[k], SEL, 0 if k == 0 else 1))
            if k == 0: a(f'v_max3_u32 {X0}, {Q(RL[0],0)}, {Q(RL[0],1)}, {Q(RL[0],2)}\nv_max_u32 {X0}, {X0}, {Q(RL[0],3)}')
            else: a(f'v_max3_u32 {X0}, {X0}, {Q(RL[k],0)}, {Q(RL[k],1)}\nv_max3_u32 {X0}, {X0}, {Q(RL[k],2)}, {Q(RL[k],3)}')
        a(f'v_cmp_eq_u32 vcc, -1, {X0}')
    def selector():
        a(f'v_bfe_u32 {Q(D,0)}, {vL}, 4, 3\nv_mov_b32 {Q(D,1)}, 0x3f80\nv_mov_b32 {Q(D,2)}, 0x3f800000')
        for r in range(4):
            a(f'v_cmp_eq_u32 vcc, {2*r}, {Q(D,0)}\nv_cndmask_b32 {Q(SEL,r)}, 0, {Q(D,1)}, vcc\nv_cmp_eq_u32 vcc, {2*r+1}, {Q(D,0)}\nv_cndmask_b32 {Q(SEL,r)}, {Q(SEL,r)}, {Q(D,2)}, vcc')
    a(f's_mov_b32 {sSPIN}, 0')
    selector()
    if opt.get('waitst', True): a('s_waitcnt vmcnt(0)')
    ST('stack')
    if not dbl2:
        a(f'L_{tag}_p5:'); ST('p5iss')
        iload(0); spin(); ired(0, 0)
        a(f's_cbranch_vccnz L_{tag}_p5')
    else:
        iload(0)
        a(f's_nop 15\ns_nop 15\nL_{tag}_p5:')
        iload(1); spin(); ired(0, 4)
        a(f's_cbranch_vccz L_{tag}_p5ok')
        iload(0); ired(1, 4)
        a(f's_cbranch_vccnz L_{tag}_p5\nL_{tag}_p5ok:')
    a(f'''
    v_permlane32_swap_b32 {Q(D,0)}, {Q(D,2)}
    v_permlane32_swap_b32 {Q(D,1)}, {Q(D,3)}
    s_mov_b64 exec, {mLO}
    v_add_f32 {Q(D,0)}, {Q(D,0)}, {Q(D,2)}
    v_add_f32 {Q(D,1)}, {Q(D,1)}, {Q(D,3)}
    v_cvt_pk_bf16_f32 {Q(D,0)}, {Q(D,0)}, {Q(D,1)}
    ''')
    pr = f'buffer_store_dword {Q(D,0)}, {vSP}, {SRD}, {sPR} offen sc1'
    pl = f'buffer_store_dword {Q(D,0)}, {vSP}, {SRD}, {sPL} offen {st}'
    rp = opt.get('rpub', 'now')
    a(pl)
    if rp == 'now': a(pr)
    a('s_mov_b64 exec, -1')
    ST('publ'); CNT(0)
    if gate: a('s_barrier')
    if rp == 'gate':
        for _ in range(opt.get('gd', 0) + 1): a('s_nop 15')
        a(f's_mov_b64 exec, {mLO}'); a(pr); a('s_mov_b64 exec, -1')
    if rp == 'barA': a(f'v_mov_b32 {Q(13,3)}, {Q(D,0)}')
    if dbl2: a('s_waitcnt vmcnt(2)')
    a(f'v_mov_b64 {QP(6,0)}, -1\nv_mov_b64 {QP(6,2)}, -1')
    for k in range(4): a(f'buffer_store_dwordx4 {Q(6)}, {vL}, {SRD}, {sIR} offen offset:{1024*k} {st}')
    a(f'''
    s_mov_b64 exec, {mLO}
    buffer_store_dword {Q(6,0)}, {vSP}, {SRD}, {sZL} offen {st}
    s_mov_b64 exec, -1
    ''')
    a(f's_branch L_{tag}_red2\nL_{tag}_nored:')
    if gate: a(f's_cmp_ge_u32 {sW}, 2\ns_cbranch_scc1 L_{tag}_red2\ns_barrier')
    a(f'L_{tag}_red2:')
    a(scalars())
    ST0()
    a(f's_branch L_{tag}_step')
    a(f'L_{tag}_p2slow:\ns_mov_b32 {sSPIN}, 0\nL_{tag}_p2s:')
    rload(); spin()
    a(f'''
    s_waitcnt vmcnt(0)
    v_max3_u32 {X1}, {Q(14,0)}, {Q(14,1)}, {Q(14,2)}
    v_max3_u32 {X1}, {X1}, {Q(14,3)}, {X0}
    v_cmp_eq_u32 vcc, -1, {X1}
    s_cbranch_vccnz L_{tag}_p2s
    ds_write_b128 {RA4}, {Q(14)} offset:{L_MEMR - L_KX}
    ds_write_b32 {RA1}, {X0} offset:{L_MEMR - L_KX}
    ''')
    CNT(2)
    a(f's_waitcnt lgkmcnt(0)\ns_branch L_{tag}_p2ok')
    a(f'''
    L_{tag}_last:
    s_waitcnt vmcnt(0)
    s_barrier
    v_mov_b32 {X0}, 64
    s_cmp_eq_u32 {sW}, 3
    s_cbranch_scc0 L_{tag}_done
    s_mov_b64 exec, 1
    buffer_store_dword {X0}, off, {SRD}, {sFX} sc1
    s_mov_b64 exec, -1
    L_{tag}_done:
    ''')
```

```python
WS_BYTES = 268435456
OFF_H1L = 0x80000
OFF_INB = 0xA0000
INB_SLOT = 40 * 4096
OFF_FLAGS = 0x180000
OFF_FKV = OFF_FLAGS
OFF_FQ = OFF_FLAGS + 0x1000
OFF_FH = OFF_FLAGS + 0x1800
OFF_FO = OFF_FLAGS + 0x1900
OFF_FEX = OFF_FLAGS + 0x2000
OFF_FXN = OFF_FLAGS + 0x4000
FLAG_BYTES = 0x6000
OFF_DUMMY = 0x1B0000
OFF_DBG = 0x1C0000
OFF_H1R = 0x200000
OFF_KV = 0x1000000
OFF_EX = 0x3000000
OFF_Q = 0x4000000
OFF_O = 0x5000000
OFF_H = 0x6000000
OFF_XN = 0x6800000
L_KX = 131072
L_MEML = L_KX + 16384
L_MEMR = L_MEML + 5120
L_SPARE = L_MEMR + 5120
LDS_BYTES = 163840
D_TICKET = 0
D_OVER = 64
D_MIXED = 68
D_CLEAR = 128
D_ARR = 132
D_NEAR = 136
D_ERR = 140
```

```python
import sys, json
sys.path.insert(0, 'gen')
from asmlib import Asm
from layout import *
import chain, bulk
from chain import SRD, sW, SPIN_MAX, sNEAR, sS
from bulk import DBG, sIDX, sJ, sA, sB, sD, sE, sSPIN, LANE, spin, wait_word

NAME = 'parallel_sum__memory_aug_recurrent_mem_tr__dense_activation_gelu__prompt'
CH_OPT = dict(touch=False, early_k=False, dbl1=True, dbl2=True, waitst=False)

def gen(opt):
    a = Asm()
    sR = 's3'
    prof = opt.get('prof')
    a(f'''
    s_cmp_ge_u32 s2, 256
    s_cbranch_scc1 L_end
    s_load_dwordx4 s[72:75], s[0:1], 104
    s_getreg_b32 {sJ}, hwreg(HW_REG_XCC_ID, 0, 4)
    ''')
    if prof: a('s_memrealtime s[48:49]')
    if opt.get('fake'):
        a(f's_mul_i32 {sJ}, s2, {opt["fake"]}\ns_lshr_b32 {sJ}, {sJ}, 5\ns_and_b32 {sJ}, {sJ}, 15')
    a(f'''
    v_lshrrev_b32 v1, 6, v0
    v_and_b32 {LANE}, 63, v0
    v_readfirstlane_b32 {sW}, v1
    s_waitcnt lgkmcnt(0)
    s_mov_b32 s4, s74
    s_mov_b32 s5, s75
    s_mov_b32 s6, {WS_BYTES}
    s_mov_b32 s7, 0x20000
    s_mov_b32 s8, s72
    s_mov_b32 s9, s73
    s_mov_b32 s10, 256
    s_mov_b32 s11, 0x20000
    s_cmp_lg_u32 {sW}, 0
    s_cbranch_scc1 L_tk
    v_mov_b32 v1, 1
    s_lshl_b32 {sA}, {sJ}, 2
    s_mov_b64 exec, 1
    buffer_atomic_add v1, off, {DBG}, {sA} sc0 sc1
    s_waitcnt vmcnt(0)
    v_readfirstlane_b32 {sIDX}, v1
    s_mov_b64 exec, -1
    s_lshl_b32 {sR}, {sJ}, 5
    s_add_u32 {sR}, {sR}, {sIDX}
    s_cmp_ge_u32 {sJ}, 8
    s_cbranch_scc1 L_over
    s_cmp_lt_u32 {sIDX}, 32
    s_cbranch_scc1 L_have
    L_over:
    v_mov_b32 v1, 1
    s_mov_b64 exec, 1
    buffer_atomic_add v1, off, {DBG}, 0 offset:{D_OVER} sc0 sc1
    s_waitcnt vmcnt(0)
    v_readfirstlane_b32 {sE}, v1
    s_mov_b64 exec, -1
    v_lshlrev_b32 v2, 2, {LANE}
    s_mov_b32 {sSPIN}, 0
    L_over_w:
    buffer_load_dword v1, v2, {DBG}, 0 offen sc1
    ''')
    spin(a)
    a(f's_waitcnt vmcnt(0)\ns_mov_b32 {sA}, 0')
    for i in range(16): a(f'v_readlane_b32 {sB}, v1, {i}\ns_add_u32 {sA}, {sA}, {sB}')
    a(f's_cmp_lt_u32 {sA}, 256\ns_cbranch_scc1 L_over_w')
    for i in range(8):
        a(f'''
        v_readlane_b32 {sB}, v1, {i}
        s_min_u32 {sB}, {sB}, 32
        s_add_u32 {sA}, {sB}, {sE}
        s_add_u32 {sR}, {sA}, {32 * i}
        s_cmp_lt_u32 {sA}, 32
        s_cbranch_scc1 L_over_f
        s_sub_u32 {sE}, {sA}, 32
        ''')
    a(f'''
    s_branch L_err
    L_over_f:
    s_cmp_ge_u32 {sR}, 64
    s_cbranch_scc1 L_have
    v_mov_b32 v1, 1
    s_mov_b64 exec, 1
    buffer_atomic_or v1, off, {DBG}, 0 offset:{D_MIXED} sc1
    s_waitcnt vmcnt(0)
    s_mov_b64 exec, -1
    L_have:
    v_mov_b32 v1, {sR}
    v_mov_b32 v2, 0
    ds_write_b32 v2, v1
    s_waitcnt lgkmcnt(0)
    L_tk:
    s_barrier
    v_mov_b32 v2, 0
    ds_read_b32 v1, v2
    s_waitcnt lgkmcnt(0)
    v_readfirstlane_b32 {sR}, v1
    s_barrier
    s_and_b32 {sR}, {sR}, 255
    s_lshr_b32 {sJ}, {sR}, 5
    s_and_b32 {sIDX}, {sR}, 31
    s_cmp_lt_u32 {sJ}, 2
    s_cbranch_scc1 L_role_chain
    s_cmp_lt_u32 {sJ}, 4
    s_cbranch_scc1 L_role_kv
    s_cmp_eq_u32 {sJ}, 4
    s_cbranch_scc1 L_role_q
    s_cmp_eq_u32 {sJ}, 7
    s_cbranch_scc1 L_role_h
    ''')
    a(f's_sub_u32 {sJ}, {sJ}, 5\ns_lshl_b32 s16, {sIDX}, 1\ns_add_u32 s16, s16, {sJ}')
    bulk.layernorm(a, 's16')
    a(f's_cmp_lt_u32 {sIDX}, 20\ns_cbranch_scc1 L_role_f2\ns_sub_u32 {sIDX}, {sIDX}, 20\ns_cmp_ge_u32 {sIDX}, 8\ns_cbranch_scc1 L_done')
    bulk.attention(a)
    a('s_branch L_done\nL_role_f2:')
    bulk.final(a)
    a(f's_branch L_done\nL_role_kv:\ns_sub_u32 {sJ}, {sJ}, 2')
    bulk.projection(a, 'kv')
    a(f's_branch L_done\nL_role_q:\ns_lshr_b32 {sJ}, {sIDX}, 4\ns_and_b32 {sIDX}, {sIDX}, 15')
    bulk.projection(a, 'q')
    a(f'''
    s_branch L_done
    L_role_h:
    s_cmp_lt_u32 {sIDX}, 14
    s_cbranch_scc1 L_role_h1
    s_cmp_eq_u32 {sIDX}, 15
    s_cbranch_scc1 L_role_near
    s_cmp_eq_u32 {sIDX}, 14
    s_cbranch_scc0 L_done
    v_mov_b64 v[4:5], 0
    v_mov_b64 v[6:7], 0
    v_lshlrev_b32 v1, 4, {LANE}
    s_lshl_b32 {sA}, {sW}, 10
    s_add_u32 {sA}, {sA}, {OFF_FLAGS}
    ''')
    for k in range(FLAG_BYTES // 4096): a(f'buffer_store_dwordx4 v[4:7], v1, {SRD}, {sA} offen sc1\ns_add_u32 {sA}, {sA}, 4096')
    a(f'''
    s_waitcnt vmcnt(0)
    s_barrier
    s_cmp_eq_u32 {sW}, 0
    s_cbranch_scc0 L_done
    v_mov_b32 v1, 1
    s_mov_b64 exec, 1
    buffer_store_dword v1, off, {DBG}, 0 offset:{D_CLEAR} sc1
    s_mov_b64 exec, -1
    s_branch L_done
    L_role_near:
    s_cmp_eq_u32 {sW}, 0
    s_cbranch_scc0 L_done
    s_mov_b64 exec, 1
    v_mov_b32 v1, 0
    s_mov_b32 s16, -1
    s_mov_b32 s17, -1
    s_mov_b32 s18, {OFF_H1R + 6144}
    ''')
    for k in range(8):
        a(f'''
        s_memtime s[20:21]
        s_waitcnt lgkmcnt(0)
        buffer_store_dword v1, off, {SRD}, s18 sc1
        s_waitcnt vmcnt(0)
        s_memtime s[22:23]
        s_waitcnt lgkmcnt(0)
        s_sub_u32 s22, s22, s20
        s_min_u32 s{16 + k % 2}, s{16 + k % 2}, s22
        s_add_u32 s18, s18, 8192
        ''')
    a(f'''
    s_cmp_lt_u32 s16, s17
    s_cselect_b32 s16, 2, 1
    v_mov_b32 v1, s16
    buffer_store_dword v1, off, {DBG}, 0 offset:{D_NEAR} sc1
    s_mov_b64 exec, -1
    s_branch L_done
    L_role_h1:
    s_cmp_ge_u32 {sIDX}, 7
    s_cselect_b32 {sJ}, 1, 0
    s_mul_i32 {sA}, {sJ}, 7
    s_sub_u32 {sIDX}, {sIDX}, {sA}
    ''')
    bulk.projection(a, 'h')
    a(f's_branch L_done\nL_role_chain:\nv_mov_b32 v79, {LANE}')
    chain.prologue(a, 'sc1')
    a(f'''
    s_barrier
    s_cmp_lg_u32 {sW}, 0
    s_cbranch_scc1 L_arr
    v_mov_b32 v14, 1
    s_mov_b64 exec, 1
    buffer_atomic_add v14, off, {DBG}, 0 offset:{D_ARR} sc1
    s_mov_b64 exec, -1
    L_arr:
    ''')
    chain.load_weights(a)
    wait_word(a, 'chclr', DBG, 0, D_CLEAR, 1, 'v14', pause=False)
    wait_word(a, 'chnear', DBG, 0, D_NEAR, 1, 'v14', pause=False)
    a(f'v_readfirstlane_b32 {sNEAR}, v14\ns_sub_u32 {sNEAR}, {sNEAR}, 1\ns_lshl_b32 {sNEAR}, {sNEAR}, 13')
    wait_word(a, 'charr', DBG, 0, D_ARR, 64, 'v14', pause=False)
    chain.publish_mem0(a, 'sc1')
    a(f'buffer_load_dword v14, off, {DBG}, 0 offset:{D_MIXED} sc1\ns_mov_b32 {sS}, 0\ns_waitcnt vmcnt(0)')
    if prof: a('s_memrealtime s[50:51]\ns_waitcnt lgkmcnt(0)\ns_mov_b32 s49, s50')
    a('v_cmp_ne_u32 vcc, 0, v14\ns_cbranch_vccnz L_chain_safe')
    co = dict(CH_OPT); co.update(opt.get('chain', {}))
    chain.chain_loop(a, 'c', '', co)
    a('s_branch L_done\nL_chain_safe:')
    chain.chain_loop(a, 'd', 'sc1', dict(CH_OPT))
    a(f'''
    s_branch L_done
    L_err:
    s_mov_b64 exec, 1
    v_mov_b32 v1, 1
    buffer_atomic_add v1, off, {DBG}, 0 offset:{D_ERR} sc1
    s_waitcnt vmcnt(0)
    L_done:
    ''')
    if prof:
        a(f'''
        s_memrealtime s[50:51]
        s_lshl_b32 {sA}, s3, 6
        s_lshl_b32 {sB}, {sW}, 4
        s_add_u32 {sA}, {sA}, {sB}
        s_add_u32 {sA}, {sA}, {OFF_DBG}
        s_waitcnt lgkmcnt(0)
        v_mov_b32 v4, s48
        v_mov_b32 v5, s49
        v_mov_b32 v6, s50
        v_mov_b32 v7, s3
        s_mov_b64 exec, 1
        buffer_store_dwordx4 v[4:7], off, {SRD}, {sA}
        s_waitcnt vmcnt(0)
        ''')
    a('L_end:')
    return a.finish(True)

def full(opt):
    ref = open(f'cdna_kernels/{NAME}.s.ref').read()
    head = [l for l in ref.split('\n') if l.startswith(';') and '@launch' not in l and 'Override' not in l and 'grid=ceil' not in l]
    k = NAME + '_kernel'
    s = '\n'.join(head) + f'\n; @launch grid=(256,1,1) block=(256,1,1) lds={LDS_BYTES}\n'
    s += f'.amdgcn_target "amdgcn-amd-amdhsa--gfx950"\n.text\n.globl {k}\n.p2align 8\n.type {k},@function\n{k}:\n'
    s += gen(opt) + 's_endpgm\n'
    s += f'''.section .rodata,"a"
.p2align 6
.amdhsa_kernel {k}
  .amdhsa_next_free_vgpr 512
  .amdhsa_next_free_sgpr 102
  .amdhsa_accum_offset 256
  .amdhsa_group_segment_fixed_size 0
  .amdhsa_kernarg_size 120
  .amdhsa_user_sgpr_count 2
  .amdhsa_user_sgpr_kernarg_segment_ptr 1
  .amdhsa_system_sgpr_workgroup_id_x 1
  .amdhsa_float_denorm_mode_32 3
.end_amdhsa_kernel
'''
    return s
if __name__ == '__main__':
    opt = json.loads(sys.argv[2]) if len(sys.argv) > 2 else {}
    out = sys.argv[1] if len(sys.argv) > 1 else f'cdna_kernels/{NAME}.s'
    open(out, 'w').write(full(opt))
```
